```python
import torch

def _softmax(x, axis=-1):
    return torch.softmax(x, dim=axis)

def _gelu(x):
    return torch.nn.functional.gelu(x, approximate='tanh')

def _silu(x):
    return torch.nn.functional.silu(x)

def _sigmoid(x):
    return torch.sigmoid(x)

def _layernorm(x, axis=-1, eps=1e-05):
    m = x.mean(dim=axis, keepdim=True)
    v = x.var(dim=axis, keepdim=True, unbiased=False)
    return (x - m) / torch.sqrt(v + eps)

def _scatter_add(tgt, idx, src, axis=0):
    return tgt.clone().index_add_(axis, idx, src)

def _segment_sum(src, seg, n):
    out = torch.zeros((n,) + src.shape[1:], dtype=src.dtype)
    return out.index_add_(0, seg, src)

def _pad(x, pw):
    flat = tuple((v for pair in reversed(pw) for v in pair))
    return torch.nn.functional.pad(x, flat)
kernel_name = 'standalone__kv_cache_quant_pre_rope_vs_post_rope__decode'

def setup_inputs():

    _w = lambda a: (lambda t: t.to(torch.bfloat16) if t.is_floating_point() else t)(torch.as_tensor(a))
    B, Sq, Skv = (2, 1, 4096)
    H, Dh0 = (32, 192)
    G = 128 if 128 > 0 else Dh0
    G = max(2, G // 2 * 2)
    Dh = max(G, Dh0 // G * G)
    Skv = max(Skv, Sq)
    ng = Dh // G
    bits = 8 if 8 > 1 else 4
    bits = max(2, min(8, bits))
    qmax = (1 << bits) - 1
    half = Dh // 2
    inv = 1.0 / 10000.0 ** (torch.arange(half) / max(1, half))
    ang_k = torch.arange(Skv)[:, None] * inv[None, :]
    ang_q = torch.arange(Skv - Sq, Skv)[:, None] * inv[None, :]
    kc = torch.cat([torch.cos(ang_k), torch.cos(ang_k)], dim=-1)
    ks = torch.cat([torch.sin(ang_k), torch.sin(ang_k)], dim=-1)
    qc = torch.cat([torch.cos(ang_q), torch.cos(ang_q)], dim=-1)
    qs = torch.cat([torch.sin(ang_q), torch.sin(ang_q)], dim=-1)
    qk_i = torch.randint(0, qmax + 1, (B, H, Skv, Dh)).to(torch.int32)
    qv_i = torch.randint(0, qmax + 1, (B, H, Skv, Dh)).to(torch.int32)
    ksc = torch.abs((lambda *s: torch.randn(*s, dtype=torch.bfloat16) * 0.05)(B, H, Skv, ng)) * 0.1 + 0.01
    kzp = torch.full((B, H, Skv, ng), qmax / 2.0)
    vsc = torch.abs((lambda *s: torch.randn(*s, dtype=torch.bfloat16) * 0.05)(B, H, Skv, ng)) * 0.1 + 0.01
    vzp = torch.full((B, H, Skv, ng), qmax / 2.0)
    return {'q': _w((lambda *s: torch.randn(*s, dtype=torch.bfloat16) * 0.8)(B, H, Sq, Dh) * 0.5), 'qk': _w(qk_i), 'k_scales': _w(ksc), 'k_zeros': _w(kzp), 'qv': _w(qv_i), 'v_scales': _w(vsc), 'v_zeros': _w(vzp), 'q_cos': _w(qc), 'q_sin': _w(qs), 'k_cos': _w(kc), 'k_sin': _w(ks)}

def reference(q, qk, k_scales, k_zeros, qv, v_scales, v_zeros, q_cos, q_sin, k_cos, k_sin):
    B, H, Sq, Dh = q.shape
    ng = k_scales.shape[-1]
    G = Dh // ng
    half = Dh // 2
    ks = (lambda x, n, axis: torch.repeat_interleave(x, n, dim=axis))(k_scales, G, axis=-1)
    kz = (lambda x, n, axis: torch.repeat_interleave(x, n, dim=axis))(k_zeros, G, axis=-1)
    k = ((lambda x, dt: x.to(dt))(qk, q.dtype) - kz) * ks
    vs = (lambda x, n, axis: torch.repeat_interleave(x, n, dim=axis))(v_scales, G, axis=-1)
    vz = (lambda x, n, axis: torch.repeat_interleave(x, n, dim=axis))(v_zeros, G, axis=-1)
    v = ((lambda x, dt: x.to(dt))(qv, q.dtype) - vz) * vs
    k1 = k[..., :half].clone()
    k2 = k[..., half:].clone()
    krh = torch.concatenate([-k2, k1], axis=-1)
    kr = k * k_cos[None, None, :, :] + krh * k_sin[None, None, :, :]
    q1 = q[..., :half].clone()
    q2 = q[..., half:].clone()
    qrh = torch.concatenate([-q2, q1], axis=-1)
    qr = q * q_cos[None, None, :, :] + qrh * q_sin[None, None, :, :]
    logits = torch.einsum('bhqd,bhkd->bhqk', qr, kr) * float(Dh) ** (-0.5)
    attn = _softmax(logits, axis=-1)
    out = torch.einsum('bhqk,bhkd->bhqd', attn, v)
    return out
```

```python
import sys, argparse, re
KN = "standalone__kv_cache_quant_pre_rope_vs_post_rope__decode_kernel"

class Em:
    def __init__(s):
        s.o = []; s.hist = []
    def raw(s, t):
        for ln in t.split("\n"):
            ln = ln.strip()
            if not ln: continue
            s.o.append(ln)
            if ln.endswith(":") or ln.startswith(".") or ln.startswith(";"):
                continue
            m = re.match(r"s_nop (\d+)", ln)
            if m:
                for _ in range(int(m.group(1)) + 1): s.hist.append((set(), False))
            else:
                s.hist.append((set(), False))
    def barrier_hist(s):
        s.raw("s_nop 1")
    def need(s, regs, n, trans_only=False):
        k = 0
        for d in range(1, n + 1):
            if d <= len(s.hist):
                w, tr = s.hist[-d]
                if (w & set(regs)) and (tr or not trans_only):
                    k = max(k, n - d + 1)
        if k: s.raw(f"s_nop {k-1}")
    def valu(s, text, dst, src, kind=""):
        if kind == "dpp": s.need(src, 2)
        if kind == "perm": s.need(list(src) + list(dst), 2)
        if kind == "rl": s.need(src, 1)
        if kind != "trans": s.need(src, 1, trans_only=True)
        s.o.append(text); s.hist.append((set(dst), kind == "trans"))
    def text(s): return "\n".join(s.o) + "\n"

def R(a, n=2): return f"v[{a}:{a+n-1}]"

def gen(U=4, pol="nt", NW=8, rotmode=0, stamp=False):
    e = Em()
    NJ = 16; NIT = NJ // U
    assert U == 4
    HW = 4
    LDS = NW * 2048 + 512
    e.raw(f"; @launch grid=(256,1,1) block=({NW*64},1,1) lds={LDS}")
    e.raw('.amdgcn_target "amdgcn-amd-amdhsa--gfx950"\n.text')
    e.raw(f".globl {KN}\n.p2align 8\n.type {KN},@function\n{KN}:")
    vK = [1, 2, 3, 4]; vCos = 5; vSin = 6; vBP = 7
    def a_(h): return 8 + 8*h
    def b_(h): return 12 + 8*h
    vks = [40, 41]; vkz = [42, 43]; vvs = [44, 45]; vvz = [46, 47]
    C = 48; S = 52; W = [56, 64]; T = [60, 68]; SW = [62, 70]
    u_ = [72, 73, 74, 75]; g_ = [76, 77, 78, 79]
    Bu = [80, 81, 82, 83]; Bg = [84, 85, 86, 87]
    Ru = [88, 89, 90, 91]; Rg = [92, 93, 94, 95]
    RING = 96
    def cs(u): return RING + 20*u
    def kq(u, h): return RING + 20*u + 4 + 4*h
    TMP = RING + 20*U
    NV = 256
    sK = 4; sV = 8; sCos = 12; sSin = 16; sCur = 20
    sKoff = 24; sCoff = 25; sIt = 26; sMask = 27; sM1 = 28; sM0 = 30
    sW = 3; sHg = 32; sRg = 33; sXcd = 34; sR0 = 35
    e.raw("s_cmp_ge_u32 s2, 256\ns_cbranch_scc1 L_end")
    e.raw("s_load_dwordx16 s[36:51], s[0:1], 0\ns_load_dwordx8 s[52:59], s[0:1], 64\ns_load_dwordx4 s[60:63], s[0:1], 96")
    if stamp:
        e.raw("s_memrealtime s[64:65]")
    e.valu("v_lshrrev_b32 v1, 6, v0", [1], [0])
    e.valu("v_and_b32 v0, 63, v0", [0], [0])
    e.valu(f"v_readfirstlane_b32 s{sW}, v1", [], [1], "rl")
    e.raw(f"s_and_b32 s{sXcd}, s2, 7\ns_lshr_b32 s{sHg}, s2, 3\ns_and_b32 s{sRg}, s{sHg}, 1")
    e.raw(f"s_lshr_b32 s{sKoff}, s{sW}, 1\ns_add_u32 s{sKoff}, s{sKoff}, s{sHg}\ns_lshl_b32 s{sKoff}, s{sKoff}, 12\ns_and_b32 s{sKoff}, s{sKoff}, 0x3fff")
    e.raw(f"s_lshr_b32 s{sHg}, s{sHg}, 1")
    e.raw(f"s_lshl_b32 s{sR0}, s{sXcd}, 9\ns_lshl_b32 s66, s{sRg}, 8\ns_add_u32 s{sR0}, s{sR0}, s66\ns_lshl_b32 s66, s{sW}, 5\ns_add_u32 s{sR0}, s{sR0}, s66")
    e.raw(f"s_lshl_b32 s66, s{sR0}, 9\ns_lshl_b32 s67, s{sHg}, 23\ns_add_u32 s66, s66, s67")
    e.valu("v_lshlrev_b32 v1, 4, v0", [1], [0])
    e.valu("v_add_u32 v1, s66, v1", [1], [1])
    for h in range(1, 4): e.valu(f"v_add_u32 v{1+h}, {h<<21}, v1", [1+h], [1])
    e.raw(f"s_lshl_b32 s66, s{sR0}, 8")
    e.valu(f"v_lshlrev_b32 v{vCos}, 3, v0", [vCos], [0])
    e.valu(f"v_xor_b32 v{vSin}, 128, v{vCos}", [vSin], [vCos])
    qo = TMP; qx = TMP + 1; qh = TMP + 2; qhx = TMP + 3
    e.valu(f"v_and_b32 v{qo}, 0xff, v{vCos}", [qo], [vCos])
    e.valu(f"v_and_b32 v{qx}, 0xff, v{vSin}", [qx], [vSin])
    e.valu(f"v_add_u32 v{vCos}, s66, v{vCos}", [vCos], [vCos])
    e.valu(f"v_add_u32 v{vSin}, s66, v{vSin}", [vSin], [vSin])
    e.raw(f"s_lshl_b32 s66, s{sHg}, 10")
    e.valu(f"v_add_u32 v{qh}, s66, v{qo}", [qh], [qo])
    e.valu(f"v_add_u32 v{qhx}, s66, v{qx}", [qhx], [qx])
    t0 = TMP + 4; t1 = TMP + 5; t2 = TMP + 6; so = [TMP + 8, TMP + 9]
    e.valu(f"v_bfe_u32 v{t0}, v0, 2, 1", [t0], [0])
    e.valu(f"v_and_b32 v{t1}, 2, v0", [t1], [0])
    e.valu(f"v_or_b32 v{t0}, v{t0}, v{t1}", [t0], [t0, t1])
    e.valu(f"v_and_b32 v{t1}, 1, v0", [t1], [0])
    e.valu(f"v_lshl_or_b32 v{t0}, v{t1}, 2, v{t0}", [t0], [t0, t1])
    e.raw(f"s_lshr_b32 s66, s{sKoff}, 10")
    e.valu(f"v_add_u32 v{t0}, s66, v{t0}", [t0], [t0])
    e.valu(f"v_bfe_u32 v{t1}, v0, 4, 1", [t1], [0])
    e.valu(f"v_bfe_u32 v{t2}, v0, 3, 1", [t2], [0])
    e.valu(f"v_lshl_or_b32 v{t1}, v{t2}, 1, v{t1}", [t1], [t1, t2])
    e.valu(f"v_lshlrev_b32 v{t1}, 12, v{t1}", [t1], [t1])
    e.valu(f"v_lshrrev_b32 v{t2}, 5, v0", [t2], [0])
    e.raw(f"s_lshl_b32 s66, s{sHg}, 14\ns_add_u32 s66, s66, s{sR0}")
    e.valu(f"v_add3_u32 v{t1}, v{t1}, v{t2}, s66", [t1], [t1, t2])
    for Ti in range(2):
        e.valu(f"v_add_u32 v{t2}, {8*Ti}, v{t0}", [t2], [t0])
        e.valu(f"v_and_b32 v{t2}, 15, v{t2}", [t2], [t2])
        e.valu(f"v_lshl_add_u32 v{t2}, v{t2}, 1, v{t1}", [t2], [t2, t1])
        e.valu(f"v_lshlrev_b32 v{so[Ti]}, 1, v{t2}", [so[Ti]], [t2])
    for r in range(40, 48): e.valu(f"v_mov_b32 v{r}, 0", [r], [])
    e.valu(f"v_and_b32 v{vBP}, 32, v0", [vBP], [0])
    e.valu(f"v_lshlrev_b32 v{vBP}, 2, v{vBP}", [vBP], [vBP])
    e.raw(f"s_mov_b32 s{sMask}, 0xffff0000")
    e.raw(f"s_mov_b32 s{sM1}, 0xcccccccc\ns_mov_b32 s{sM1+1}, 0xcccccccc\ns_mov_b32 s{sM0}, 0xaaaaaaaa\ns_mov_b32 s{sM0+1}, 0xaaaaaaaa")
    e.raw("s_waitcnt lgkmcnt(0)")
    QB = TMP + 12
    for h in range(4):
        e.raw(f"global_load_dwordx2 {R(QB+4*h)}, v{qh}, s[36:37] offset:{256*h}")
        e.raw(f"global_load_dwordx2 {R(QB+4*h+2)}, v{qhx}, s[36:37] offset:{256*h}")
    e.raw(f"global_load_dwordx2 {R(QB+16)}, v{qo}, s[50:51]")
    e.raw(f"global_load_dwordx2 {R(QB+18)}, v{qx}, s[50:51]")
    e.raw(f"global_load_dwordx2 {R(QB+20)}, v{qo}, s[52:53]")
    e.raw(f"global_load_dwordx2 {R(QB+22)}, v{qx}, s[52:53]")
    e.raw(f"s_mov_b32 s{sK}, s38\ns_mov_b32 s{sK+1}, s39\ns_mov_b32 s{sK+2}, 0x8000000\ns_mov_b32 s{sK+3}, 0x20000")
    e.raw(f"s_mov_b32 s{sCur}, s38\ns_mov_b32 s{sCur+1}, s39\ns_mov_b32 s{sCur+2}, 0x8000000\ns_mov_b32 s{sCur+3}, 0x20000")
    e.raw(f"s_mov_b32 s{sV}, s44\ns_mov_b32 s{sV+1}, s45\ns_mov_b32 s{sV+2}, 0x8000000\ns_mov_b32 s{sV+3}, 0x20000")
    e.raw(f"s_mov_b32 s{sCos}, s54\ns_mov_b32 s{sCos+1}, s55\ns_mov_b32 s{sCos+2}, 0x100000\ns_mov_b32 s{sCos+3}, 0x20000")
    e.raw(f"s_mov_b32 s{sSin}, s56\ns_mov_b32 s{sSin+1}, s57\ns_mov_b32 s{sSin+2}, 0x100000\ns_mov_b32 s{sSin+3}, 0x20000")
    def adv():
        e.raw(f"s_add_u32 s{sKoff}, s{sKoff}, 1024\ns_and_b32 s{sKoff}, s{sKoff}, 0x3fff")
    def issue_cs(u):
        e.raw(f"s_lshr_b32 s{sCoff}, s{sKoff}, 1")
        e.raw(f"buffer_load_dwordx2 {R(cs(u))}, v{vCos}, s[{sCos}:{sCos+3}], s{sCoff} offen")
        e.raw(f"buffer_load_dwordx2 {R(cs(u)+2)}, v{vSin}, s[{sSin}:{sSin+3}], s{sCoff} offen")
    def issue_k(u, h, srd=sCur):
        e.raw(f"buffer_load_dwordx4 {R(kq(u,h),4)}, v{vK[h]}, s[{srd}:{srd+3}], s{sKoff} offen {pol}")
    for u in range(U):
        issue_cs(u)
        for h in range(4): issue_k(u, h)
        adv()
    for Ti in range(2):
        for (dst, p) in ((vks, 40), (vkz, 42), (vvs, 46), (vvz, 48)):
            e.raw(f"global_load_short_d16_hi v{dst[Ti]}, v{so[Ti]}, s[{p}:{p+1}]")
    e.raw(f"s_waitcnt vmcnt({6*U+8})")
    A1 = C; A2 = S; B1 = W[0]; B2 = W[1]
    sgn = T[0]
    def unpack(dst, src):
        e.valu(f"v_lshlrev_b32 v{dst}, 16, v{src}", [dst], [src])
        e.valu(f"v_and_b32 v{dst+1}, s{sMask}, v{src}", [dst+1], [src])
        e.valu(f"v_lshlrev_b32 v{dst+2}, 16, v{src+1}", [dst+2], [src+1])
        e.valu(f"v_and_b32 v{dst+3}, s{sMask}, v{src+1}", [dst+3], [src+1])
    unpack(A1, QB+16); unpack(B1, QB+18); unpack(A2, QB+20); unpack(B2, QB+22)
    e.valu(f"v_and_b32 v{sgn}, 16, v0", [sgn], [0])
    e.valu(f"v_lshlrev_b32 v{sgn}, 27, v{sgn}", [sgn], [sgn])
    for i in range(4):
        e.valu(f"v_xor_b32 v{B1+i}, v{sgn}, v{B1+i}", [B1+i], [B1+i, sgn])
    e.valu(f"v_xor_b32 v{sgn}, 0x80000000, v{sgn}", [sgn], [sgn])
    for i in range(4):
        e.valu(f"v_xor_b32 v{A2+i}, v{sgn}, v{A2+i}", [A2+i], [A2+i, sgn])
    QO = 72; QX = 76
    for h in range(4):
        unpack(QO, QB+4*h); unpack(QX, QB+4*h+2)
        for p in (0, 2):
            e.valu(f"v_pk_mul_f32 {R(a_(h)+p)}, {R(QO+p)}, {R(A1+p)}", [a_(h)+p, a_(h)+p+1], [QO+p, QO+p+1])
            e.valu(f"v_pk_mul_f32 {R(b_(h)+p)}, {R(QX+p)}, {R(B1+p)}", [b_(h)+p, b_(h)+p+1], [QX+p, QX+p+1])
        for p in (0, 2):
            e.valu(f"v_pk_fma_f32 {R(a_(h)+p)}, {R(QX+p)}, {R(A2+p)}, {R(a_(h)+p)}", [a_(h)+p, a_(h)+p+1], [])
            e.valu(f"v_pk_fma_f32 {R(b_(h)+p)}, {R(QO+p)}, {R(B2+p)}, {R(b_(h)+p)}", [b_(h)+p, b_(h)+p+1], [])
    e.raw(f"s_mov_b32 s{sIt}, 0")
    e.raw(".p2align 6\nL_k:")
    e.raw(f"s_cmp_eq_u32 s{sIt}, {NIT-1}\ns_cselect_b32 s{sCur}, s{sV}, s{sK}\ns_cselect_b32 s{sCur+1}, s{sV+1}, s{sK+1}")
    for u in range(U):
        e.raw(f"s_waitcnt vmcnt({6*U-2})")
        unpack(C, cs(u)); unpack(S, cs(u)+2)
        issue_cs(u)
        for hp in range(2):
            hs = (2*hp, 2*hp+1)
            for k, h in enumerate(hs):
                for p in (0, 2):
                    e.valu(f"v_pk_mul_f32 {R(W[k]+p)}, {R(a_(h)+p)}, {R(C+p)}", [W[k]+p, W[k]+p+1], [])
            for k, h in enumerate(hs):
                for p in (0, 2):
                    e.valu(f"v_pk_fma_f32 {R(W[k]+p)}, {R(b_(h)+p)}, {R(S+p)}, {R(W[k]+p)}", [W[k]+p, W[k]+p+1], [])
            for k, h in enumerate(hs):
                x = kq(u, h)
                e.raw(f"s_waitcnt vmcnt({6*U-1})")
                for i in range(4): e.valu(f"v_cvt_f32_i32 v{x+i}, v{x+i}", [x+i], [x+i])
                e.valu(f"v_pk_add_f32 {R(SW[k])}, {R(W[k])}, {R(W[k]+2)}", [SW[k], SW[k]+1], [])
                e.valu(f"v_pk_mul_f32 {R(T[k])}, {R(x)}, {R(W[k])}", [T[k], T[k]+1], [])
                e.valu(f"v_pk_fma_f32 {R(T[k])}, {R(x+2)}, {R(W[k]+2)}, {R(T[k])}", [T[k], T[k]+1], [])
                issue_k(u, h)
                e.valu(f"v_add_f32 v{g_[h]}, v{SW[k]}, v{SW[k]+1}", [g_[h]], [])
                e.valu(f"v_add_f32 v{u_[h]}, v{T[k]}, v{T[k]+1}", [u_[h]], [])
        adv()
        for (q, Bq) in ((g_, Bg), (u_, Bu)):
            e.valu(f"v_permlane16_swap_b32 v{q[0]}, v{q[1]}", [q[0], q[1]], [q[0], q[1]], "perm")
            e.valu(f"v_permlane16_swap_b32 v{q[2]}, v{q[3]}", [q[2], q[3]], [q[2], q[3]], "perm")
        for (q, Bq) in ((g_, Bg), (u_, Bu)):
            e.valu(f"v_add_f32 v{Bq[u]}, v{q[0]}, v{q[1]}", [Bq[u]], [])
            e.valu(f"v_add_f32 v{q[2]}, v{q[2]}, v{q[3]}", [q[2]], [])
        for (q, Bq) in ((g_, Bg), (u_, Bu)):
            e.valu(f"v_add_f32_dpp v{Bq[u]}, v{Bq[u]}, v{Bq[u]} row_ror:8 row_mask:0xf bank_mask:0x3", [Bq[u]], [Bq[u]], "dpp")
        for (q, Bq) in ((g_, Bg), (u_, Bu)):
            e.valu(f"v_add_f32_dpp v{Bq[u]}, v{q[2]}, v{q[2]} row_ror:8 row_mask:0xf bank_mask:0xc", [Bq[u]], [q[2]], "dpp")
        if u & 1:
            for (q, Bq) in ((g_, Bg), (u_, Bu)):
                e.valu(f"v_add_f32_dpp v{Bq[u-1]}, v{Bq[u-1]}, v{Bq[u-1]} row_half_mirror row_mask:0xf bank_mask:0x5", [Bq[u-1]], [Bq[u-1]], "dpp")
            for (q, Bq) in ((g_, Bg), (u_, Bu)):
                e.valu(f"v_add_f32_dpp v{Bq[u-1]}, v{Bq[u]}, v{Bq[u]} row_half_mirror row_mask:0xf bank_mask:0xa", [Bq[u-1]], [Bq[u]], "dpp")
        if u == 3:
            for (Bq, Rq) in ((Bg, Rg), (Bu, Ru)):
                e.valu(f"v_cndmask_b32 v{Bq[1]}, v{Bq[2]}, v{Bq[0]}, s[{sM1}:{sM1+1}]", [Bq[1]], [])
                e.valu(f"v_cndmask_b32 v{Bq[3]}, v{Bq[0]}, v{Bq[2]}, s[{sM1}:{sM1+1}]", [Bq[3]], [])
                for i in (3, 2, 1): e.valu(f"v_mov_b32 v{Rq[i]}, v{Rq[i-1]}", [Rq[i]], [])
            for (Bq, Rq) in ((Bg, Rg), (Bu, Ru)):
                e.valu(f"v_add_f32_dpp v{Rq[0]}, v{Bq[1]}, v{Bq[3]} quad_perm:[2,3,0,1] row_mask:0xf bank_mask:0xf", [Rq[0]], [Bq[1]], "dpp")
    e.raw(f"s_add_u32 s{sIt}, s{sIt}, 1\ns_cmp_lt_u32 s{sIt}, {NIT}\ns_cbranch_scc1 L_k")
    if stamp: e.raw("s_memrealtime s[68:69]")
    Lu = [72, 73]; Lg = [74, 75]
    for (Rq, Lq, tt) in ((Rg, Lg, (76, 77, 78, 79)), (Ru, Lu, (80, 81, 82, 83))):
        for Ti in range(2):
            X = Rq[3-2*Ti]; Y = Rq[2-2*Ti]
            e.valu(f"v_cndmask_b32 v{tt[2*Ti]}, v{Y}, v{X}, s[{sM0}:{sM0+1}]", [tt[2*Ti]], [])
            e.valu(f"v_cndmask_b32 v{tt[2*Ti+1]}, v{X}, v{Y}, s[{sM0}:{sM0+1}]", [tt[2*Ti+1]], [])
    for (Rq, Lq, tt) in ((Rg, Lg, (76, 77, 78, 79)), (Ru, Lu, (80, 81, 82, 83))):
        for Ti in range(2):
            e.valu(f"v_add_f32_dpp v{Lq[Ti]}, v{tt[2*Ti]}, v{tt[2*Ti+1]} quad_perm:[1,0,3,2] row_mask:0xf bank_mask:0xf", [Lq[Ti]], [tt[2*Ti]], "dpp")
    import math
    cscale = math.log2(math.e) / math.sqrt(128.0)
    import struct
    cbits = struct.unpack("<I", struct.pack("<f", cscale))[0]
    e.raw(f"s_mov_b32 s66, {cbits:#x}")
    for Ti in range(2):
        e.valu(f"v_fma_f32 v{Lu[Ti]}, -v{vkz[Ti]}, v{Lg[Ti]}, v{Lu[Ti]}", [Lu[Ti]], [])
        e.valu(f"v_mul_f32 v{vks[Ti]}, s66, v{vks[Ti]}", [vks[Ti]], [])
    for Ti in range(2):
        e.valu(f"v_mul_f32 v{Lu[Ti]}, v{Lu[Ti]}, v{vks[Ti]}", [Lu[Ti]], [])
    vm = 76; vl = 77; vcr = 78; tx = 79; P = [80, 81]
    def allred(r, op, tmp):
        e.valu(f"{op}_dpp v{r}, v{r}, v{r} quad_perm:[1,0,3,2] row_mask:0xf bank_mask:0xf", [r], [r], "dpp")
        e.valu(f"{op}_dpp v{r}, v{r}, v{r} quad_perm:[2,3,0,1] row_mask:0xf bank_mask:0xf", [r], [r], "dpp")
        e.valu(f"{op}_dpp v{r}, v{r}, v{r} row_half_mirror row_mask:0xf bank_mask:0xf", [r], [r], "dpp")
        e.valu(f"v_mov_b32 v{tmp}, v{r}", [tmp], [r])
        e.valu(f"v_permlane32_swap_b32 v{tmp}, v{r}", [tmp, r], [tmp, r], "perm")
        e.valu(f"{op} v{r}, v{r}, v{tmp}", [r], [r, tmp])
    e.valu(f"v_max_f32 v{vm}, v{Lu[0]}, v{Lu[1]}", [vm], [])
    allred(vm, "v_max_f32", tx)
    for Ti in range(2): e.valu(f"v_sub_f32 v{P[Ti]}, v{Lu[Ti]}, v{vm}", [P[Ti]], [])
    for Ti in range(2): e.valu(f"v_exp_f32 v{P[Ti]}, v{P[Ti]}", [P[Ti]], [P[Ti]], "trans")
    e.valu(f"v_add_f32 v{vl}, v{P[0]}, v{P[1]}", [vl], [P[0], P[1]])
    Q = [84, 85, 86, 87]
    e.valu(f"v_mul_f32 v{Q[0]}, v{P[0]}, v{vvs[0]}", [Q[0]], [P[0]])
    e.valu(f"v_mul_f32 v{Q[2]}, v{P[1]}, v{vvs[1]}", [Q[2]], [P[1]])
    e.valu(f"v_mul_f32 v{vcr}, v{Q[0]}, v{vvz[0]}", [vcr], [])
    e.valu(f"v_mov_b32 v{Q[1]}, v{Q[0]}", [Q[1]], [])
    e.valu(f"v_fmac_f32 v{vcr}, v{Q[2]}, v{vvz[1]}", [vcr], [])
    e.valu(f"v_mov_b32 v{Q[3]}, v{Q[2]}", [Q[3]], [])
    allred(vl, "v_add_f32", tx)
    allred(vcr, "v_add_f32", 82)
    def acc(h): return 8 + 4*h
    for r in range(8, 24): e.valu(f"v_mov_b32 v{r}, 0", [r], [])
    PB = 48
    def vbody(last):
        for u in range(U):
            for h in range(4):
                src = (h & 1)*16 + (h >> 1)*8 + (u & 1)*4 + (u >> 1)*2
                e.raw(f"ds_bpermute_b32 v{PB+4*u+h}, v{vBP}, v{Q[0]} offset:{4*src}")
        e.valu(f"v_xor_b32 v{vBP}, 4, v{vBP}", [vBP], [])
        n = 4*U
        for u in range(U):
            for h in range(4):
                x = kq(u, h); i_ = 4*u + h
                wv = (4*U - 1) if not last else (4*U - 1 - i_)
                e.raw(f"s_waitcnt vmcnt({wv}) lgkmcnt({min(15, n-1-i_)})")
                for i in range(4): e.valu(f"v_cvt_f32_i32 v{x+i}, v{x+i}", [x+i], [x+i])
                pr = PB + i_; pe = pr & ~1
                sel = "op_sel_hi:[1,0,1]" if pr == pe else "op_sel:[0,1,0] op_sel_hi:[1,1,1]"
                for p in (0, 2):
                    e.valu(f"v_pk_fma_f32 {R(acc(h)+p)}, {R(x+p)}, {R(pe)}, {R(acc(h)+p)} {sel}", [acc(h)+p, acc(h)+p+1], [])
                if not last: issue_k(u, h, sV)
            if not last: adv()
        if not last:
            for i in range(3): e.valu(f"v_mov_b32 v{Q[i]}, v{Q[i+1]}", [Q[i]], [])
    e.raw(f"s_mov_b32 s{sIt}, 0")
    e.raw(".p2align 6\nL_v:")
    vbody(False)
    e.raw(f"s_add_u32 s{sIt}, s{sIt}, 1\ns_cmp_lt_u32 s{sIt}, {NIT-1}\ns_cbranch_scc1 L_v")
    vbody(True)
    if stamp: e.raw("s_memrealtime s[70:71]")
    ad = 24; c01 = 25; c23 = 26; la = 27; hb = 28; t3 = 29
    e.valu(f"v_lshrrev_b32 v{ad}, 5, v0", [ad], [])
    e.valu(f"v_lshlrev_b32 v{ad}, 6, v{ad}", [ad], [])
    e.raw(f"ds_bpermute_b32 v{c01}, v{ad}, v{vcr}\nds_bpermute_b32 v{c23}, v{ad}, v{vcr} offset:32")
    for hp in range(2):
        for i in range(4):
            x = acc(2*hp) + i; y = acc(2*hp+1) + i
            e.valu(f"v_permlane32_swap_b32 v{x}, v{y}", [x, y], [x, y], "perm")
    for hp in range(2):
        for i in range(4):
            x = acc(2*hp) + i; y = acc(2*hp+1) + i
            e.valu(f"v_add_f32 v{x}, v{x}, v{y}", [x], [])
    e.raw(f"s_lshl_b32 s66, s{sW}, 11")
    e.valu(f"v_lshlrev_b32 v{la}, 4, v0", [la], [])
    e.valu(f"v_add_u32 v{la}, s66, v{la}", [la], [])
    e.valu(f"v_bfe_u32 v{hb}, v0, 4, 1", [hb], [])
    e.valu(f"v_bfe_u32 v{t3}, v0, 3, 1", [t3], [])
    e.valu(f"v_lshl_or_b32 v{hb}, v{t3}, 1, v{hb}", [hb], [])
    e.raw(f"s_lshl_b32 s66, s{sW}, 2\ns_add_u32 s66, s66, {NW*2048}")
    e.valu(f"v_mul_u32_u24 v{hb}, {NW*4}, v{hb}", [hb], [])
    e.valu(f"v_add_u32 v{hb}, s66, v{hb}", [hb], [])
    e.raw(f"ds_write_b32 v{hb}, v{vm}\nds_write_b32 v{hb}, v{vl} offset:256")
    e.raw("s_waitcnt lgkmcnt(2)")
    for i in range(4):
        e.valu(f"v_sub_f32 v{acc(0)+i}, v{acc(0)+i}, v{c01}", [acc(0)+i], [])
        e.valu(f"v_sub_f32 v{acc(2)+i}, v{acc(2)+i}, v{c23}", [acc(2)+i], [])
    e.raw(f"ds_write_b128 v{la}, {R(acc(0),4)}\nds_write_b128 v{la}, {R(acc(2),4)} offset:1024")
    e.raw("s_waitcnt lgkmcnt(0)\ns_barrier")
    e.raw(f"s_cmp_ge_u32 s{sW}, 4\ns_cbranch_scc1 L_end")
    NG = NW // 2
    assert NG == 4
    g = 24; dq = 25; aa = 26; ma = 27
    e.valu(f"v_lshrrev_b32 v{g}, 5, v0", [g], [])
    e.valu(f"v_and_b32 v{dq}, 31, v0", [dq], [])
    e.valu(f"v_lshlrev_b32 v{aa}, 4, v{dq}", [aa], [])
    e.raw(f"s_lshl_b32 s66, s{sW}, 9")
    e.valu(f"v_lshl_add_u32 v{aa}, v{g}, 13, v{aa}", [aa], [])
    e.valu(f"v_add_u32 v{aa}, s66, v{aa}", [aa], [])
    e.raw(f"s_mul_i32 s66, s{sW}, {NW*4}\ns_add_u32 s66, s66, {NW*2048}")
    e.valu(f"v_lshlrev_b32 v{ma}, 4, v{g}", [ma], [])
    e.valu(f"v_add_u32 v{ma}, s66, v{ma}", [ma], [])
    MM = 32; LL = 36; AA = 48
    e.raw(f"ds_read_b128 {R(MM,4)}, v{ma}\nds_read_b128 {R(LL,4)}, v{ma} offset:256")
    for i in range(NG): e.raw(f"ds_read_b128 {R(AA+4*i,4)}, v{aa} offset:{2048*i}")
    def merge(n, MM, LL, AA, mstride=1, waits=None):
        M = 12; L = 13; tmp = 14
        if n == 4:
            e.valu(f"v_max3_f32 v{M}, v{MM}, v{MM+mstride}, v{MM+2*mstride}", [M], [])
            e.valu(f"v_max_f32 v{M}, v{M}, v{MM+3*mstride}", [M], [])
        else:
            e.valu(f"v_max3_f32 v{M}, v{MM}, v{MM+mstride}, v{MM+2*mstride}", [M], [])
            for i in range(3, n-1, 2):
                e.valu(f"v_max3_f32 v{M}, v{M}, v{MM+i*mstride}, v{MM+(i+1)*mstride}", [M], [])
            if (n - 3) % 2: e.valu(f"v_max_f32 v{M}, v{M}, v{MM+(n-1)*mstride}", [M], [])
        e.valu(f"v_mov_b32 v{tmp}, v{M}", [tmp], [])
        e.valu(f"v_permlane32_swap_b32 v{tmp}, v{M}", [tmp, M], [tmp, M], "perm")
        e.valu(f"v_max_f32 v{M}, v{M}, v{tmp}", [M], [])
        for i in range(n): e.valu(f"v_sub_f32 v{MM+i*mstride}, v{MM+i*mstride}, v{M}", [MM+i*mstride], [])
        for i in range(n): e.valu(f"v_exp_f32 v{MM+i*mstride}, v{MM+i*mstride}", [MM+i*mstride], [MM+i*mstride], "trans")
        e.valu(f"v_mul_f32 v{L}, v{MM}, v{LL}", [L], [MM])
        for i in range(1, n): e.valu(f"v_fmac_f32 v{L}, v{MM+i*mstride}, v{LL+i*mstride}", [L], [MM+i*mstride])
        if waits: e.raw(waits)
        for i in range(n):
            for c in range(4):
                if i == 0: e.valu(f"v_mul_f32 v{8+c}, v{MM}, v{AA+c}", [8+c], [])
                else: e.valu(f"v_fmac_f32 v{8+c}, v{MM+i*mstride}, v{AA+4*i+c}", [8+c], [])
        for k, r in enumerate((8, 9, 10, 11, 13)):
            e.valu(f"v_mov_b32 v{16+k}, v{r}", [16+k], [])
        for k, r in enumerate((8, 9, 10, 11, 13)):
            e.valu(f"v_permlane32_swap_b32 v{16+k}, v{r}", [16+k, r], [16+k, r], "perm")
        for k, r in enumerate((8, 9, 10, 11, 13)):
            e.valu(f"v_add_f32 v{r}, v{r}, v{16+k}", [r], [])
    e.raw(f"s_waitcnt lgkmcnt({NG})")
    merge(NG, MM, LL, AA, 1, "s_waitcnt lgkmcnt(0)")
    e.raw(f"s_lshl_b32 s66, s{sHg}, 2\ns_add_u32 s66, s66, s{sW}")
    e.raw(f"s_lshl_b32 s67, s{sXcd}, 1\ns_add_u32 s67, s67, s{sRg}")
    e.raw(f"s_lshl_b32 s72, s66, 4\ns_add_u32 s72, s72, s67")
    e.raw("s_mov_b32 s76, s62\ns_mov_b32 s77, s63\ns_mov_b32 s78, 0x200000\ns_mov_b32 s79, 0x20000")
    e.raw("s_lshl_b32 s73, s72, 9\ns_lshl_b32 s74, s72, 3\ns_add_u32 s74, s74, 0x100000")
    e.valu(f"v_lshlrev_b32 v{aa}, 4, v{dq}", [aa], [])
    e.valu(f"v_mov_b32 v{ma}, 0", [ma], [])
    e.raw("s_mov_b32 exec_lo, -1\ns_mov_b32 exec_hi, 0")
    e.raw(f"buffer_store_dwordx4 v[8:11], v{aa}, s[76:79], s73 offen sc1")
    e.raw("s_mov_b64 exec, 1")
    e.raw(f"buffer_store_dwordx2 v[12:13], v{ma}, s[76:79], s74 offen sc1")
    e.raw("s_lshl_b32 s75, s66, 2")
    e.valu(f"v_mov_b32 v{ma}, s75", [ma], [])
    e.valu(f"v_mov_b32 v15, 1", [15], [])
    e.raw("s_waitcnt vmcnt(0)")
    e.raw(f"global_atomic_add v15, v{ma}, v15, s[60:61] sc0")
    e.raw("s_waitcnt vmcnt(0)")
    e.valu("v_readfirstlane_b32 s75, v15", [], [15], "rl")
    e.raw("s_mov_b64 exec, -1")
    e.raw("s_cmp_eq_u32 s75, 15\ns_cbranch_scc0 L_end")
    e.raw("s_lshl_b32 s73, s66, 13\ns_lshl_b32 s74, s66, 7\ns_add_u32 s74, s74, 0x100000")
    e.valu(f"v_lshl_add_u32 v{aa}, v{g}, 12, v{aa}", [aa], [])
    e.valu(f"v_lshlrev_b32 v{ma}, 6, v{g}", [ma], [])
    ML = 32
    for i in range(4): e.raw(f"buffer_load_dwordx4 {R(ML+4*i,4)}, v{ma}, s[76:79], s74 offen offset:{16*i} sc1")
    for i in range(8): e.raw(f"buffer_load_dwordx4 {R(48+4*i,4)}, v{aa}, s[76:79], s73 offen offset:{512*i} sc1")
    e.raw("s_waitcnt vmcnt(8)")
    merge(8, ML, ML+1, 48, 2, "s_waitcnt vmcnt(0)")
    e.valu("v_rcp_f32 v13, v13", [13], [13], "trans")
    for c in range(4): e.valu(f"v_mul_f32 v{8+c}, v{8+c}, v13", [8+c], [13])
    e.valu("v_cvt_pk_bf16_f32 v8, v8, v9", [8], [])
    e.valu("v_cvt_pk_bf16_f32 v9, v10, v11", [9], [])
    e.raw("s_lshl_b32 s73, s66, 8")
    e.raw("s_mov_b32 s76, s58\ns_mov_b32 s77, s59\ns_mov_b32 s78, 0x4000\ns_mov_b32 s79, 0x20000")
    e.valu(f"v_lshlrev_b32 v{aa}, 3, v{dq}", [aa], [])
    e.raw("s_mov_b32 exec_lo, -1\ns_mov_b32 exec_hi, 0")
    e.raw(f"buffer_store_dwordx2 v[8:9], v{aa}, s[76:79], s73 offen")
    e.raw("L_end:\ns_endpgm")
    e.raw(f""".section .rodata,"a"
.p2align 6
.amdhsa_kernel {KN}
.amdhsa_next_free_vgpr {NV}
.amdhsa_next_free_sgpr 102
.amdhsa_accum_offset {NV}
.amdhsa_group_segment_fixed_size 0
.amdhsa_kernarg_size 112
.amdhsa_user_sgpr_count 2
.amdhsa_user_sgpr_kernarg_segment_ptr 1
.amdhsa_system_sgpr_workgroup_id_x 1
.amdhsa_float_denorm_mode_32 3
.end_amdhsa_kernel""")
    return e.text()

if __name__ == "__main__":
    ap = argparse.ArgumentParser()
    ap.add_argument("--pol", default="nt"); ap.add_argument("-o")
    a = ap.parse_args()
    open(a.o, "w").write(gen(pol=a.pol))
```

```python
import sys, argparse, re
KN = "standalone__kv_cache_quant_pre_rope_vs_post_rope__decode_kernel"

class Em:
    def __init__(s):
        s.o = []; s.hist = []
    def raw(s, t):
        for ln in t.split("\n"):
            ln = ln.strip()
            if not ln: continue
            s.o.append(ln)
            if ln.endswith(":") or ln.startswith(".") or ln.startswith(";"):
                continue
            m = re.match(r"s_nop (\d+)", ln)
            if m:
                for _ in range(int(m.group(1)) + 1): s.hist.append((set(), False))
            else:
                s.hist.append((set(), False))
    def barrier_hist(s):
        s.raw("s_nop 1")
    def need(s, regs, n, trans_only=False):
        k = 0
        for d in range(1, n + 1):
            if d <= len(s.hist):
                w, tr = s.hist[-d]
                if (w & set(regs)) and (tr or not trans_only):
                    k = max(k, n - d + 1)
        if k: s.raw(f"s_nop {k-1}")
    def valu(s, text, dst, src, kind=""):
        if kind == "dpp": s.need(src, 2)
        if kind == "perm": s.need(list(src) + list(dst), 2)
        if kind == "rl": s.need(src, 1)
        if kind != "trans": s.need(src, 1, trans_only=True)
        s.o.append(text); s.hist.append((set(dst), kind == "trans"))
    def text(s): return "\n".join(s.o) + "\n"

def R(a, n=2): return f"v[{a}:{a+n-1}]"

def gen(U=4, pol="nt", NW=8, rotmode=0, stamp=False, bal="", exp=""):
    e = Em()
    NJ = 16; NIT = NJ // U
    assert U == 4
    HW = 4
    LDS = NW * 2048 + 512
    e.raw(f"; @launch grid=(256,1,1) block=({NW*64},1,1) lds={LDS}")
    e.raw('.amdgcn_target "amdgcn-amd-amdhsa--gfx950"\n.text')
    e.raw(f".globl {KN}\n.p2align 8\n.type {KN},@function\n{KN}:")
    vK = [1, 2, 3, 4]; vCos = 5; vSin = 6; vBP = 7
    def a_(h): return 8 + 8*h
    def b_(h): return 12 + 8*h
    vks = [40, 41]; vkz = [42, 43]; vvs = [44, 45]; vvz = [46, 47]
    C = 48; S = 52; W = [56, 64]; T = [60, 68]; SW = [62, 70]
    u_ = [72, 73, 74, 75]; g_ = [76, 77, 78, 79]
    Bu = [80, 81, 82, 83]; Bg = [84, 85, 86, 87]
    Ru = [88, 89, 90, 91]; Rg = [92, 93, 94, 95]
    RING = 96
    def cs(u): return RING + 20*u
    def kq(u, h): return RING + 20*u + 4 + 4*h
    TMP = RING + 20*U
    NV = 256
    sK = 4; sV = 8; sCos = 12; sSin = 16; sCur = 20
    sKoff = 24; sCoff = 25; sIt = 26; sMask = 27; sM1 = 28; sM0 = 30
    sW = 3; sHg = 32; sRg = 33; sXcd = 34; sR0 = 35
    e.raw("s_cmp_ge_u32 s2, 256\ns_cbranch_scc1 L_end")
    if bal == "prio": e.raw("s_setprio 3")
    e.raw("s_load_dwordx16 s[36:51], s[0:1], 0\ns_load_dwordx8 s[52:59], s[0:1], 64\ns_load_dwordx4 s[60:63], s[0:1], 96")
    def st(k):
        if stamp: e.raw(f"s_memrealtime s[{80+2*k}:{81+2*k}]\ns_waitcnt lgkmcnt(0)")
    def dump():
        if not stamp: return
        e.raw("s_mov_b64 exec, 1")
        e.raw(f"s_lshl_b32 s99, s2, 3\ns_add_u32 s99, s99, s{sW}\ns_lshl_b32 s99, s99, 6\ns_add_u32 s99, s99, 0x400000")
        e.raw("s_mov_b32 s76, s62\ns_mov_b32 s77, s63\ns_mov_b32 s78, 0x800000\ns_mov_b32 s79, 0x20000")
        e.raw("v_mov_b32 v250, 0")
        e.raw("s_getreg_b32 s98, hwreg(HW_REG_XCC_ID)")
        for k in range(10):
            e.raw(f"v_mov_b32 v251, s{80+2*k}\nbuffer_store_dword v251, v250, s[76:79], s99 offen offset:{4*k}\ns_nop 1")
        e.raw("s_mov_b64 exec, -1")
    if stamp:
        for k in range(9): e.raw(f"s_mov_b32 s{80+2*k}, 0")
        e.raw("s_memrealtime s[80:81]")
    e.valu("v_lshrrev_b32 v1, 6, v0", [1], [0])
    e.valu("v_and_b32 v0, 63, v0", [0], [0])
    e.valu(f"v_readfirstlane_b32 s{sW}, v1", [], [1], "rl")
    e.raw(f"s_and_b32 s{sXcd}, s2, 7\ns_lshr_b32 s{sHg}, s2, 3\ns_and_b32 s{sRg}, s{sHg}, 1")
    e.raw(f"s_lshr_b32 s{sKoff}, s{sW}, 1\ns_add_u32 s{sKoff}, s{sKoff}, s{sHg}\ns_lshl_b32 s{sKoff}, s{sKoff}, 12\ns_and_b32 s{sKoff}, s{sKoff}, 0x3fff")
    e.raw(f"s_lshr_b32 s{sHg}, s{sHg}, 1")
    e.raw(f"s_lshl_b32 s{sR0}, s{sXcd}, 9\ns_lshl_b32 s66, s{sRg}, 8\ns_add_u32 s{sR0}, s{sR0}, s66\ns_lshl_b32 s66, s{sW}, 5\ns_add_u32 s{sR0}, s{sR0}, s66")
    e.raw(f"s_lshl_b32 s66, s{sR0}, 9\ns_lshl_b32 s67, s{sHg}, 23\ns_add_u32 s66, s66, s67")
    e.valu("v_lshlrev_b32 v1, 4, v0", [1], [0])
    e.valu("v_add_u32 v1, s66, v1", [1], [1])
    for h in range(1, 4): e.valu(f"v_add_u32 v{1+h}, {h<<21}, v1", [1+h], [1])
    e.raw(f"s_lshl_b32 s66, s{sR0}, 8")
    e.valu(f"v_lshlrev_b32 v{vCos}, 3, v0", [vCos], [0])
    e.valu(f"v_xor_b32 v{vSin}, 128, v{vCos}", [vSin], [vCos])
    qo = TMP; qx = TMP + 1; qh = TMP + 2; qhx = TMP + 3
    e.valu(f"v_and_b32 v{qo}, 0xff, v{vCos}", [qo], [vCos])
    e.valu(f"v_and_b32 v{qx}, 0xff, v{vSin}", [qx], [vSin])
    e.valu(f"v_add_u32 v{vCos}, s66, v{vCos}", [vCos], [vCos])
    e.valu(f"v_add_u32 v{vSin}, s66, v{vSin}", [vSin], [vSin])
    e.raw(f"s_lshl_b32 s66, s{sHg}, 10")
    e.valu(f"v_add_u32 v{qh}, s66, v{qo}", [qh], [qo])
    e.valu(f"v_add_u32 v{qhx}, s66, v{qx}", [qhx], [qx])
    t0 = TMP + 4; t1 = TMP + 5; t2 = TMP + 6; so = [TMP + 8, TMP + 9]
    e.valu(f"v_bfe_u32 v{t0}, v0, 2, 1", [t0], [0])
    e.valu(f"v_and_b32 v{t1}, 2, v0", [t1], [0])
    e.valu(f"v_or_b32 v{t0}, v{t0}, v{t1}", [t0], [t0, t1])
    e.valu(f"v_and_b32 v{t1}, 1, v0", [t1], [0])
    e.valu(f"v_lshl_or_b32 v{t0}, v{t1}, 2, v{t0}", [t0], [t0, t1])
    e.raw(f"s_lshr_b32 s66, s{sKoff}, 10")
    e.valu(f"v_add_u32 v{t0}, s66, v{t0}", [t0], [t0])
    e.valu(f"v_bfe_u32 v{t1}, v0, 4, 1", [t1], [0])
    e.valu(f"v_bfe_u32 v{t2}, v0, 3, 1", [t2], [0])
    e.valu(f"v_lshl_or_b32 v{t1}, v{t2}, 1, v{t1}", [t1], [t1, t2])
    e.valu(f"v_lshlrev_b32 v{t1}, 12, v{t1}", [t1], [t1])
    e.valu(f"v_lshrrev_b32 v{t2}, 5, v0", [t2], [0])
    e.raw(f"s_lshl_b32 s66, s{sHg}, 14\ns_add_u32 s66, s66, s{sR0}")
    e.valu(f"v_add3_u32 v{t1}, v{t1}, v{t2}, s66", [t1], [t1, t2])
    for Ti in range(2):
        e.valu(f"v_add_u32 v{t2}, {8*Ti}, v{t0}", [t2], [t0])
        e.valu(f"v_and_b32 v{t2}, 15, v{t2}", [t2], [t2])
        e.valu(f"v_lshl_add_u32 v{t2}, v{t2}, 1, v{t1}", [t2], [t2, t1])
        e.valu(f"v_lshlrev_b32 v{so[Ti]}, 1, v{t2}", [so[Ti]], [t2])
    for r in range(40, 48): e.valu(f"v_mov_b32 v{r}, 0", [r], [])
    e.valu(f"v_and_b32 v{vBP}, 32, v0", [vBP], [0])
    e.valu(f"v_lshlrev_b32 v{vBP}, 2, v{vBP}", [vBP], [vBP])
    e.raw(f"s_mov_b32 s{sMask}, 0xffff0000")
    e.raw(f"s_mov_b32 s{sM1}, 0xcccccccc\ns_mov_b32 s{sM1+1}, 0xcccccccc\ns_mov_b32 s{sM0}, 0xaaaaaaaa\ns_mov_b32 s{sM0+1}, 0xaaaaaaaa")
    e.raw("s_waitcnt lgkmcnt(0)")
    QB = TMP + 12
    for h in range(4):
        e.raw(f"global_load_dwordx2 {R(QB+4*h)}, v{qh}, s[36:37] offset:{256*h}")
        e.raw(f"global_load_dwordx2 {R(QB+4*h+2)}, v{qhx}, s[36:37] offset:{256*h}")
    e.raw(f"global_load_dwordx2 {R(QB+16)}, v{qo}, s[50:51]")
    e.raw(f"global_load_dwordx2 {R(QB+18)}, v{qx}, s[50:51]")
    e.raw(f"global_load_dwordx2 {R(QB+20)}, v{qo}, s[52:53]")
    e.raw(f"global_load_dwordx2 {R(QB+22)}, v{qx}, s[52:53]")
    e.raw(f"s_mov_b32 s{sK}, s38\ns_mov_b32 s{sK+1}, s39\ns_mov_b32 s{sK+2}, 0x8000000\ns_mov_b32 s{sK+3}, 0x20000")
    e.raw(f"s_mov_b32 s{sCur}, s38\ns_mov_b32 s{sCur+1}, s39\ns_mov_b32 s{sCur+2}, 0x8000000\ns_mov_b32 s{sCur+3}, 0x20000")
    e.raw(f"s_mov_b32 s{sV}, s44\ns_mov_b32 s{sV+1}, s45\ns_mov_b32 s{sV+2}, 0x8000000\ns_mov_b32 s{sV+3}, 0x20000")
    e.raw(f"s_mov_b32 s{sCos}, s54\ns_mov_b32 s{sCos+1}, s55\ns_mov_b32 s{sCos+2}, 0x100000\ns_mov_b32 s{sCos+3}, 0x20000")
    e.raw(f"s_mov_b32 s{sSin}, s56\ns_mov_b32 s{sSin+1}, s57\ns_mov_b32 s{sSin+2}, 0x100000\ns_mov_b32 s{sSin+3}, 0x20000")
    def adv():
        e.raw(f"s_add_u32 s{sKoff}, s{sKoff}, 1024\ns_and_b32 s{sKoff}, s{sKoff}, 0x3fff")
    def issue_cs(u):
        e.raw(f"s_lshr_b32 s{sCoff}, s{sKoff}, 1" if "cs0" not in exp else f"s_mov_b32 s{sCoff}, 0")
        e.raw(f"buffer_load_dwordx2 {R(cs(u))}, v{vCos}, s[{sCos}:{sCos+3}], s{sCoff} offen")
        e.raw(f"buffer_load_dwordx2 {R(cs(u)+2)}, v{vSin}, s[{sSin}:{sSin+3}], s{sCoff} offen")
    def issue_k(u, h, srd=sCur):
        e.raw(f"buffer_load_dwordx4 {R(kq(u,h),4)}, v{vK[h]}, s[{srd}:{srd+3}], s{sKoff} offen {pol}")
    for u in range(U):
        issue_cs(u)
        for h in range(4): issue_k(u, h)
        adv()
    for Ti in range(2):
        for (dst, p) in ((vks, 40), (vkz, 42), (vvs, 46), (vvz, 48)):
            e.raw(f"global_load_short_d16_hi v{dst[Ti]}, v{so[Ti]}, s[{p}:{p+1}]")
    st(7)
    e.raw(f"s_waitcnt vmcnt({6*U+8})")
    st(8)
    A1 = C; A2 = S; B1 = W[0]; B2 = W[1]
    sgn = T[0]
    def unpack(dst, src):
        e.valu(f"v_lshlrev_b32 v{dst}, 16, v{src}", [dst], [src])
        e.valu(f"v_and_b32 v{dst+1}, s{sMask}, v{src}", [dst+1], [src])
        e.valu(f"v_lshlrev_b32 v{dst+2}, 16, v{src+1}", [dst+2], [src+1])
        e.valu(f"v_and_b32 v{dst+3}, s{sMask}, v{src+1}", [dst+3], [src+1])
    unpack(A1, QB+16); unpack(B1, QB+18); unpack(A2, QB+20); unpack(B2, QB+22)
    e.valu(f"v_and_b32 v{sgn}, 16, v0", [sgn], [0])
    e.valu(f"v_lshlrev_b32 v{sgn}, 27, v{sgn}", [sgn], [sgn])
    for i in range(4):
        e.valu(f"v_xor_b32 v{B1+i}, v{sgn}, v{B1+i}", [B1+i], [B1+i, sgn])
    e.valu(f"v_xor_b32 v{sgn}, 0x80000000, v{sgn}", [sgn], [sgn])
    for i in range(4):
        e.valu(f"v_xor_b32 v{A2+i}, v{sgn}, v{A2+i}", [A2+i], [A2+i, sgn])
    QO = 72; QX = 76
    for h in range(4):
        unpack(QO, QB+4*h); unpack(QX, QB+4*h+2)
        for p in (0, 2):
            e.valu(f"v_pk_mul_f32 {R(a_(h)+p)}, {R(QO+p)}, {R(A1+p)}", [a_(h)+p, a_(h)+p+1], [QO+p, QO+p+1])
            e.valu(f"v_pk_mul_f32 {R(b_(h)+p)}, {R(QX+p)}, {R(B1+p)}", [b_(h)+p, b_(h)+p+1], [QX+p, QX+p+1])
        for p in (0, 2):
            e.valu(f"v_pk_fma_f32 {R(a_(h)+p)}, {R(QX+p)}, {R(A2+p)}, {R(a_(h)+p)}", [a_(h)+p, a_(h)+p+1], [])
            e.valu(f"v_pk_fma_f32 {R(b_(h)+p)}, {R(QO+p)}, {R(B2+p)}, {R(b_(h)+p)}", [b_(h)+p, b_(h)+p+1], [])
    st(1)
    e.raw(f"s_mov_b32 s{sIt}, 0")
    real_valu = e.valu
    if "novalu" in exp:
        def fake(text, dst, src_, kind=""):
            if text.startswith("v_cvt_f32_i32") and (dst[0] % 4 == 0): real_valu(text, dst, src_, kind)
        e.valu = fake
    e.raw(".p2align 6\nL_k:")
    e.raw(f"s_cmp_eq_u32 s{sIt}, {NIT-1}\ns_cselect_b32 s{sCur}, s{sV}, s{sK}\ns_cselect_b32 s{sCur+1}, s{sV+1}, s{sK+1}")
    for u in range(U):
        e.raw(f"s_waitcnt vmcnt({6*U-2})")
        unpack(C, cs(u)); unpack(S, cs(u)+2)
        issue_cs(u)
        for hp in range(2):
            hs = (2*hp, 2*hp+1)
            for k, h in enumerate(hs):
                for p in (0, 2):
                    e.valu(f"v_pk_mul_f32 {R(W[k]+p)}, {R(a_(h)+p)}, {R(C+p)}", [W[k]+p, W[k]+p+1], [])
            for k, h in enumerate(hs):
                for p in (0, 2):
                    e.valu(f"v_pk_fma_f32 {R(W[k]+p)}, {R(b_(h)+p)}, {R(S+p)}, {R(W[k]+p)}", [W[k]+p, W[k]+p+1], [])
            for k, h in enumerate(hs):
                x = kq(u, h)
                e.raw(f"s_waitcnt vmcnt({6*U-1})")
                for i in range(4): e.valu(f"v_cvt_f32_i32 v{x+i}, v{x+i}", [x+i], [x+i])
                e.valu(f"v_pk_add_f32 {R(SW[k])}, {R(W[k])}, {R(W[k]+2)}", [SW[k], SW[k]+1], [])
                e.valu(f"v_pk_mul_f32 {R(T[k])}, {R(x)}, {R(W[k])}", [T[k], T[k]+1], [])
                e.valu(f"v_pk_fma_f32 {R(T[k])}, {R(x+2)}, {R(W[k]+2)}, {R(T[k])}", [T[k], T[k]+1], [])
                issue_k(u, h)
                e.valu(f"v_add_f32 v{g_[h]}, v{SW[k]}, v{SW[k]+1}", [g_[h]], [])
                e.valu(f"v_add_f32 v{u_[h]}, v{T[k]}, v{T[k]+1}", [u_[h]], [])
        adv()
        for (q, Bq) in ((g_, Bg), (u_, Bu)):
            e.valu(f"v_permlane16_swap_b32 v{q[0]}, v{q[1]}", [q[0], q[1]], [q[0], q[1]], "perm")
            e.valu(f"v_permlane16_swap_b32 v{q[2]}, v{q[3]}", [q[2], q[3]], [q[2], q[3]], "perm")
        for (q, Bq) in ((g_, Bg), (u_, Bu)):
            e.valu(f"v_add_f32 v{Bq[u]}, v{q[0]}, v{q[1]}", [Bq[u]], [])
            e.valu(f"v_add_f32 v{q[2]}, v{q[2]}, v{q[3]}", [q[2]], [])
        for (q, Bq) in ((g_, Bg), (u_, Bu)):
            e.valu(f"v_add_f32_dpp v{Bq[u]}, v{Bq[u]}, v{Bq[u]} row_ror:8 row_mask:0xf bank_mask:0x3", [Bq[u]], [Bq[u]], "dpp")
        for (q, Bq) in ((g_, Bg), (u_, Bu)):
            e.valu(f"v_add_f32_dpp v{Bq[u]}, v{q[2]}, v{q[2]} row_ror:8 row_mask:0xf bank_mask:0xc", [Bq[u]], [q[2]], "dpp")
        if u & 1:
            for (q, Bq) in ((g_, Bg), (u_, Bu)):
                e.valu(f"v_add_f32_dpp v{Bq[u-1]}, v{Bq[u-1]}, v{Bq[u-1]} row_half_mirror row_mask:0xf bank_mask:0x5", [Bq[u-1]], [Bq[u-1]], "dpp")
            for (q, Bq) in ((g_, Bg), (u_, Bu)):
                e.valu(f"v_add_f32_dpp v{Bq[u-1]}, v{Bq[u]}, v{Bq[u]} row_half_mirror row_mask:0xf bank_mask:0xa", [Bq[u-1]], [Bq[u]], "dpp")
        if u == 3:
            for (Bq, Rq) in ((Bg, Rg), (Bu, Ru)):
                e.valu(f"v_cndmask_b32 v{Bq[1]}, v{Bq[2]}, v{Bq[0]}, s[{sM1}:{sM1+1}]", [Bq[1]], [])
                e.valu(f"v_cndmask_b32 v{Bq[3]}, v{Bq[0]}, v{Bq[2]}, s[{sM1}:{sM1+1}]", [Bq[3]], [])
                for i in (3, 2, 1): e.valu(f"v_mov_b32 v{Rq[i]}, v{Rq[i-1]}", [Rq[i]], [])
            for (Bq, Rq) in ((Bg, Rg), (Bu, Ru)):
                e.valu(f"v_add_f32_dpp v{Rq[0]}, v{Bq[1]}, v{Bq[3]} quad_perm:[2,3,0,1] row_mask:0xf bank_mask:0xf", [Rq[0]], [Bq[1]], "dpp")
    if bal == "bar": e.raw("s_barrier")
    if bal == "prio":
        e.raw(f"s_cmp_eq_u32 s{sIt}, 1\ns_cbranch_scc0 L_kp\ns_setprio 2\nL_kp:")
    e.raw(f"s_add_u32 s{sIt}, s{sIt}, 1\ns_cmp_lt_u32 s{sIt}, {NIT}\ns_cbranch_scc1 L_k")
    if bal == "prio": e.raw("s_setprio 1")
    e.valu = real_valu
    st(2)
    Lu = [72, 73]; Lg = [74, 75]
    for (Rq, Lq, tt) in ((Rg, Lg, (76, 77, 78, 79)), (Ru, Lu, (80, 81, 82, 83))):
        for Ti in range(2):
            X = Rq[3-2*Ti]; Y = Rq[2-2*Ti]
            e.valu(f"v_cndmask_b32 v{tt[2*Ti]}, v{Y}, v{X}, s[{sM0}:{sM0+1}]", [tt[2*Ti]], [])
            e.valu(f"v_cndmask_b32 v{tt[2*Ti+1]}, v{X}, v{Y}, s[{sM0}:{sM0+1}]", [tt[2*Ti+1]], [])
    for (Rq, Lq, tt) in ((Rg, Lg, (76, 77, 78, 79)), (Ru, Lu, (80, 81, 82, 83))):
        for Ti in range(2):
            e.valu(f"v_add_f32_dpp v{Lq[Ti]}, v{tt[2*Ti]}, v{tt[2*Ti+1]} quad_perm:[1,0,3,2] row_mask:0xf bank_mask:0xf", [Lq[Ti]], [tt[2*Ti]], "dpp")
    import math
    cscale = math.log2(math.e) / math.sqrt(128.0)
    import struct
    cbits = struct.unpack("<I", struct.pack("<f", cscale))[0]
    e.raw(f"s_mov_b32 s66, {cbits:#x}")
    for Ti in range(2):
        e.valu(f"v_fma_f32 v{Lu[Ti]}, -v{vkz[Ti]}, v{Lg[Ti]}, v{Lu[Ti]}", [Lu[Ti]], [])
        e.valu(f"v_mul_f32 v{vks[Ti]}, s66, v{vks[Ti]}", [vks[Ti]], [])
    for Ti in range(2):
        e.valu(f"v_mul_f32 v{Lu[Ti]}, v{Lu[Ti]}, v{vks[Ti]}", [Lu[Ti]], [])
    vm = 76; vl = 77; vcr = 78; tx = 79; P = [80, 81]
    def allred(r, op, tmp):
        e.valu(f"{op}_dpp v{r}, v{r}, v{r} quad_perm:[1,0,3,2] row_mask:0xf bank_mask:0xf", [r], [r], "dpp")
        e.valu(f"{op}_dpp v{r}, v{r}, v{r} quad_perm:[2,3,0,1] row_mask:0xf bank_mask:0xf", [r], [r], "dpp")
        e.valu(f"{op}_dpp v{r}, v{r}, v{r} row_half_mirror row_mask:0xf bank_mask:0xf", [r], [r], "dpp")
        e.valu(f"v_mov_b32 v{tmp}, v{r}", [tmp], [r])
        e.valu(f"v_permlane32_swap_b32 v{tmp}, v{r}", [tmp, r], [tmp, r], "perm")
        e.valu(f"{op} v{r}, v{r}, v{tmp}", [r], [r, tmp])
    e.valu(f"v_max_f32 v{vm}, v{Lu[0]}, v{Lu[1]}", [vm], [])
    allred(vm, "v_max_f32", tx)
    for Ti in range(2): e.valu(f"v_sub_f32 v{P[Ti]}, v{Lu[Ti]}, v{vm}", [P[Ti]], [])
    for Ti in range(2): e.valu(f"v_exp_f32 v{P[Ti]}, v{P[Ti]}", [P[Ti]], [P[Ti]], "trans")
    e.valu(f"v_add_f32 v{vl}, v{P[0]}, v{P[1]}", [vl], [P[0], P[1]])
    Q = [84, 85, 86, 87]
    e.valu(f"v_mul_f32 v{Q[0]}, v{P[0]}, v{vvs[0]}", [Q[0]], [P[0]])
    e.valu(f"v_mul_f32 v{Q[2]}, v{P[1]}, v{vvs[1]}", [Q[2]], [P[1]])
    e.valu(f"v_mul_f32 v{vcr}, v{Q[0]}, v{vvz[0]}", [vcr], [])
    e.valu(f"v_mov_b32 v{Q[1]}, v{Q[0]}", [Q[1]], [])
    e.valu(f"v_fmac_f32 v{vcr}, v{Q[2]}, v{vvz[1]}", [vcr], [])
    e.valu(f"v_mov_b32 v{Q[3]}, v{Q[2]}", [Q[3]], [])
    allred(vl, "v_add_f32", tx)
    allred(vcr, "v_add_f32", 82)
    def acc(h): return 8 + 4*h
    for r in range(8, 24): e.valu(f"v_mov_b32 v{r}, 0", [r], [])
    PB = 48
    def vbody(last):
        for u in range(U):
            for h in range(4):
                src = (h & 1)*16 + (h >> 1)*8 + (u & 1)*4 + (u >> 1)*2
                e.raw(f"ds_bpermute_b32 v{PB+4*u+h}, v{vBP}, v{Q[0]} offset:{4*src}")
        e.valu(f"v_xor_b32 v{vBP}, 4, v{vBP}", [vBP], [])
        n = 4*U
        for u in range(U):
            for h in range(4):
                x = kq(u, h); i_ = 4*u + h
                wv = (4*U - 1) if not last else (4*U - 1 - i_)
                e.raw(f"s_waitcnt vmcnt({wv}) lgkmcnt({min(15, n-1-i_)})")
                for i in range(4): e.valu(f"v_cvt_f32_i32 v{x+i}, v{x+i}", [x+i], [x+i])
                pr = PB + i_; pe = pr & ~1
                sel = "op_sel_hi:[1,0,1]" if pr == pe else "op_sel:[0,1,0] op_sel_hi:[1,1,1]"
                for p in (0, 2):
                    e.valu(f"v_pk_fma_f32 {R(acc(h)+p)}, {R(x+p)}, {R(pe)}, {R(acc(h)+p)} {sel}", [acc(h)+p, acc(h)+p+1], [])
                if not last: issue_k(u, h, sV)
            if not last: adv()
        if not last:
            for i in range(3): e.valu(f"v_mov_b32 v{Q[i]}, v{Q[i+1]}", [Q[i]], [])
    e.raw(f"s_mov_b32 s{sIt}, 0")
    if "novalu" in exp: e.valu = fake
    e.raw(".p2align 6\nL_v:")
    vbody(False)
    if bal == "bar": e.raw("s_barrier")
    if bal == "prio":
        e.raw(f"s_cmp_eq_u32 s{sIt}, 0\ns_cbranch_scc0 L_vp\ns_setprio 0\nL_vp:")
    e.raw(f"s_add_u32 s{sIt}, s{sIt}, 1\ns_cmp_lt_u32 s{sIt}, {NIT-1}\ns_cbranch_scc1 L_v")
    vbody(True)
    e.valu = real_valu
    st(3)
    ad = 24; c01 = 25; c23 = 26; la = 27; hb = 28; t3 = 29
    e.valu(f"v_lshrrev_b32 v{ad}, 5, v0", [ad], [])
    e.valu(f"v_lshlrev_b32 v{ad}, 6, v{ad}", [ad], [])
    e.raw(f"ds_bpermute_b32 v{c01}, v{ad}, v{vcr}\nds_bpermute_b32 v{c23}, v{ad}, v{vcr} offset:32")
    for hp in range(2):
        for i in range(4):
            x = acc(2*hp) + i; y = acc(2*hp+1) + i
            e.valu(f"v_permlane32_swap_b32 v{x}, v{y}", [x, y], [x, y], "perm")
    for hp in range(2):
        for i in range(4):
            x = acc(2*hp) + i; y = acc(2*hp+1) + i
            e.valu(f"v_add_f32 v{x}, v{x}, v{y}", [x], [])
    e.raw(f"s_lshl_b32 s66, s{sW}, 11")
    e.valu(f"v_lshlrev_b32 v{la}, 4, v0", [la], [])
    e.valu(f"v_add_u32 v{la}, s66, v{la}", [la], [])
    e.valu(f"v_bfe_u32 v{hb}, v0, 4, 1", [hb], [])
    e.valu(f"v_bfe_u32 v{t3}, v0, 3, 1", [t3], [])
    e.valu(f"v_lshl_or_b32 v{hb}, v{t3}, 1, v{hb}", [hb], [])
    e.raw(f"s_lshl_b32 s66, s{sW}, 2\ns_add_u32 s66, s66, {NW*2048}")
    e.valu(f"v_mul_u32_u24 v{hb}, {NW*4}, v{hb}", [hb], [])
    e.valu(f"v_add_u32 v{hb}, s66, v{hb}", [hb], [])
    e.raw(f"ds_write_b32 v{hb}, v{vm}\nds_write_b32 v{hb}, v{vl} offset:256")
    e.raw("s_waitcnt lgkmcnt(2)")
    for i in range(4):
        e.valu(f"v_sub_f32 v{acc(0)+i}, v{acc(0)+i}, v{c01}", [acc(0)+i], [])
        e.valu(f"v_sub_f32 v{acc(2)+i}, v{acc(2)+i}, v{c23}", [acc(2)+i], [])
    e.raw(f"ds_write_b128 v{la}, {R(acc(0),4)}\nds_write_b128 v{la}, {R(acc(2),4)} offset:1024")
    e.raw("s_waitcnt lgkmcnt(0)\ns_barrier")
    st(4)
    e.raw(f"s_cmp_ge_u32 s{sW}, 4\ns_cbranch_scc1 L_dump")
    NG = NW // 2
    assert NG == 4
    g = 24; dq = 25; aa = 26; ma = 27
    e.valu(f"v_lshrrev_b32 v{g}, 5, v0", [g], [])
    e.valu(f"v_and_b32 v{dq}, 31, v0", [dq], [])
    e.valu(f"v_lshlrev_b32 v{aa}, 4, v{dq}", [aa], [])
    e.raw(f"s_lshl_b32 s66, s{sW}, 9")
    e.valu(f"v_lshl_add_u32 v{aa}, v{g}, 13, v{aa}", [aa], [])
    e.valu(f"v_add_u32 v{aa}, s66, v{aa}", [aa], [])
    e.raw(f"s_mul_i32 s66, s{sW}, {NW*4}\ns_add_u32 s66, s66, {NW*2048}")
    e.valu(f"v_lshlrev_b32 v{ma}, 4, v{g}", [ma], [])
    e.valu(f"v_add_u32 v{ma}, s66, v{ma}", [ma], [])
    MM = 32; LL = 36; AA = 48
    e.raw(f"ds_read_b128 {R(MM,4)}, v{ma}\nds_read_b128 {R(LL,4)}, v{ma} offset:256")
    for i in range(NG): e.raw(f"ds_read_b128 {R(AA+4*i,4)}, v{aa} offset:{2048*i}")
    def merge(n, MM, LL, AA, mstride=1, waits=None):
        M = 12; L = 13; tmp = 14
        if n == 4:
            e.valu(f"v_max3_f32 v{M}, v{MM}, v{MM+mstride}, v{MM+2*mstride}", [M], [])
            e.valu(f"v_max_f32 v{M}, v{M}, v{MM+3*mstride}", [M], [])
        else:
            e.valu(f"v_max3_f32 v{M}, v{MM}, v{MM+mstride}, v{MM+2*mstride}", [M], [])
            for i in range(3, n-1, 2):
                e.valu(f"v_max3_f32 v{M}, v{M}, v{MM+i*mstride}, v{MM+(i+1)*mstride}", [M], [])
            if (n - 3) % 2: e.valu(f"v_max_f32 v{M}, v{M}, v{MM+(n-1)*mstride}", [M], [])
        e.valu(f"v_mov_b32 v{tmp}, v{M}", [tmp], [])
        e.valu(f"v_permlane32_swap_b32 v{tmp}, v{M}", [tmp, M], [tmp, M], "perm")
        e.valu(f"v_max_f32 v{M}, v{M}, v{tmp}", [M], [])
        for i in range(n): e.valu(f"v_sub_f32 v{MM+i*mstride}, v{MM+i*mstride}, v{M}", [MM+i*mstride], [])
        for i in range(n): e.valu(f"v_exp_f32 v{MM+i*mstride}, v{MM+i*mstride}", [MM+i*mstride], [MM+i*mstride], "trans")
        e.valu(f"v_mul_f32 v{L}, v{MM}, v{LL}", [L], [MM])
        for i in range(1, n): e.valu(f"v_fmac_f32 v{L}, v{MM+i*mstride}, v{LL+i*mstride}", [L], [MM+i*mstride])
        if waits: e.raw(waits)
        for i in range(n):
            for c in range(4):
                if i == 0: e.valu(f"v_mul_f32 v{8+c}, v{MM}, v{AA+c}", [8+c], [])
                else: e.valu(f"v_fmac_f32 v{8+c}, v{MM+i*mstride}, v{AA+4*i+c}", [8+c], [])
        for k, r in enumerate((8, 9, 10, 11, 13)):
            e.valu(f"v_mov_b32 v{16+k}, v{r}", [16+k], [])
        for k, r in enumerate((8, 9, 10, 11, 13)):
            e.valu(f"v_permlane32_swap_b32 v{16+k}, v{r}", [16+k, r], [16+k, r], "perm")
        for k, r in enumerate((8, 9, 10, 11, 13)):
            e.valu(f"v_add_f32 v{r}, v{r}, v{16+k}", [r], [])
    e.raw(f"s_waitcnt lgkmcnt({NG})")
    merge(NG, MM, LL, AA, 1, "s_waitcnt lgkmcnt(0)")
    e.raw(f"s_lshl_b32 s66, s{sHg}, 2\ns_add_u32 s66, s66, s{sW}")
    e.raw(f"s_lshl_b32 s67, s{sXcd}, 1\ns_add_u32 s67, s67, s{sRg}")
    e.raw(f"s_lshl_b32 s72, s66, 4\ns_add_u32 s72, s72, s67")
    e.raw("s_mov_b32 s76, s62\ns_mov_b32 s77, s63\ns_mov_b32 s78, 0x200000\ns_mov_b32 s79, 0x20000")
    e.raw("s_lshl_b32 s73, s72, 9\ns_lshl_b32 s74, s72, 3\ns_add_u32 s74, s74, 0x100000")
    e.valu(f"v_lshlrev_b32 v{aa}, 4, v{dq}", [aa], [])
    e.valu(f"v_mov_b32 v{ma}, 0", [ma], [])
    e.raw("s_mov_b32 exec_lo, -1\ns_mov_b32 exec_hi, 0")
    e.raw(f"buffer_store_dwordx4 v[8:11], v{aa}, s[76:79], s73 offen sc1")
    e.raw("s_mov_b64 exec, 1")
    e.raw(f"buffer_store_dwordx2 v[12:13], v{ma}, s[76:79], s74 offen sc1")
    e.raw("s_lshl_b32 s75, s66, 2")
    e.valu(f"v_mov_b32 v{ma}, s75", [ma], [])
    e.valu(f"v_mov_b32 v15, 1", [15], [])
    e.raw("s_waitcnt vmcnt(0)")
    e.raw(f"global_atomic_add v15, v{ma}, v15, s[60:61] sc0")
    e.raw("s_waitcnt vmcnt(0)")
    e.valu("v_readfirstlane_b32 s75, v15", [], [15], "rl")
    e.raw("s_mov_b64 exec, -1")
    st(5)
    e.raw("s_cmp_eq_u32 s75, 15\ns_cbranch_scc0 L_dump")
    e.raw("s_lshl_b32 s73, s66, 13\ns_lshl_b32 s74, s66, 7\ns_add_u32 s74, s74, 0x100000")
    e.valu(f"v_lshl_add_u32 v{aa}, v{g}, 12, v{aa}", [aa], [])
    e.valu(f"v_lshlrev_b32 v{ma}, 6, v{g}", [ma], [])
    ML = 32
    for i in range(4): e.raw(f"buffer_load_dwordx4 {R(ML+4*i,4)}, v{ma}, s[76:79], s74 offen offset:{16*i} sc1")
    for i in range(8): e.raw(f"buffer_load_dwordx4 {R(48+4*i,4)}, v{aa}, s[76:79], s73 offen offset:{512*i} sc1")
    e.raw("s_waitcnt vmcnt(8)")
    merge(8, ML, ML+1, 48, 2, "s_waitcnt vmcnt(0)")
    e.valu("v_rcp_f32 v13, v13", [13], [13], "trans")
    for c in range(4): e.valu(f"v_mul_f32 v{8+c}, v{8+c}, v13", [8+c], [13])
    e.valu("v_cvt_pk_bf16_f32 v8, v8, v9", [8], [])
    e.valu("v_cvt_pk_bf16_f32 v9, v10, v11", [9], [])
    e.raw("s_lshl_b32 s73, s66, 8")
    e.raw("s_mov_b32 s76, s58\ns_mov_b32 s77, s59\ns_mov_b32 s78, 0x4000\ns_mov_b32 s79, 0x20000")
    e.valu(f"v_lshlrev_b32 v{aa}, 3, v{dq}", [aa], [])
    e.raw("s_mov_b32 exec_lo, -1\ns_mov_b32 exec_hi, 0")
    e.raw(f"buffer_store_dwordx2 v[8:9], v{aa}, s[76:79], s73 offen")
    if stamp: e.raw("s_waitcnt vmcnt(0)")
    st(6)
    e.raw("L_dump:")
    dump()
    e.raw("L_end:\ns_endpgm")
    e.raw(f""".section .rodata,"a"
.p2align 6
.amdhsa_kernel {KN}
.amdhsa_next_free_vgpr {NV}
.amdhsa_next_free_sgpr 102
.amdhsa_accum_offset {NV}
.amdhsa_group_segment_fixed_size 0
.amdhsa_kernarg_size 112
.amdhsa_user_sgpr_count 2
.amdhsa_user_sgpr_kernarg_segment_ptr 1
.amdhsa_system_sgpr_workgroup_id_x 1
.amdhsa_float_denorm_mode_32 3
.end_amdhsa_kernel""")
    return e.text()

if __name__ == "__main__":
    ap = argparse.ArgumentParser()
    ap.add_argument("--pol", default="nt"); ap.add_argument("-o"); ap.add_argument("--exp", default=""); ap.add_argument("--bal", default=""); ap.add_argument("--stamp", action="store_true")
    a = ap.parse_args()
    open(a.o, "w").write(gen(pol=a.pol, stamp=a.stamp, bal=a.bal, exp=a.exp))
```

```python
import sys, argparse, re, math, struct
from gen import Em, R, KN

def gen(RD=1, pol="nt", stamp=False, barj=1, rot=(3, 1, 1), exp="", emul=True, qbar=True, sleep=0, pre=4, scnt="", csnt="", early=True, coop=True):
    e = Em()
    NW = 8; HW = 8; NIT = 4
    SLAB = 4096
    MLB = NW * SLAB; ABB = MLB + 512
    SCB = ABB + 8192; NON = SCB + 8192; LDS = NON + 64
    e.raw(f"; @launch grid=(256,1,1) block=({NW*64},1,1) lds={LDS}")
    e.raw('.amdgcn_target "amdgcn-amd-amdhsa--gfx950"\n.text')
    e.raw(f".globl {KN}\n.p2align 8\n.type {KN},@function\n{KN}:")
    vK = list(range(1, 9)); vCos = 9; vSin = 10; vBP = 11
    def a_(h): return 16 + 8*h
    def b_(h): return 20 + 8*h
    vks = [80, 81]; vkz = [82, 83]; vvs = [84, 85]; vvz = [86, 87]
    C = 88; S = 92; W = [96, 104]; T = [100, 108]; SW = [102, 110]
    u_ = list(range(112, 120)); g_ = list(range(120, 128))
    Cu = 128; Cg = 129; Dt = [130, 131, 132, 133]
    Ru = [134, 135, 136, 137]; Rg = [138, 139, 140, 141]
    RING = 144
    def cs(s): return RING + 36*s
    def kq(s, h): return RING + 36*s + 4 + 4*h
    TMP = 220
    NV = 256
    sK = 4; sV = 8; sCos = 12; sSin = 16; sCur = 20
    sKoff = 24; sCoff = 25; sIt = 26; sMask = 27; sM1 = 28; sM0 = 30
    sW = 3; sHg = 32; sRg = 33; sXcd = 34; sR0 = 35
    PER = 10
    def st(k):
        if stamp: e.raw(f"s_memrealtime s[{80+2*k}:{81+2*k}]\ns_waitcnt lgkmcnt(0)")
    def dump():
        if not stamp: return
        e.raw("s_mov_b64 exec, 1")
        e.raw(f"s_lshl_b32 s99, s2, 3\ns_add_u32 s99, s99, s{sW}\ns_lshl_b32 s99, s99, 6\ns_add_u32 s99, s99, 0x400000")
        e.raw("s_mov_b32 s76, s62\ns_mov_b32 s77, s63\ns_mov_b32 s78, 0x800000\ns_mov_b32 s79, 0x20000")
        e.raw("v_mov_b32 v250, 0")
        e.raw("s_getreg_b32 s98, hwreg(HW_REG_XCC_ID)")
        for k in range(10):
            e.raw(f"v_mov_b32 v251, s{80+2*k}\nbuffer_store_dword v251, v250, s[76:79], s99 offen offset:{4*k}\ns_nop 1")
        e.raw("s_mov_b64 exec, -1")
    e.raw("s_cmp_ge_u32 s2, 256\ns_cbranch_scc1 L_end")
    e.raw("s_load_dwordx16 s[36:51], s[0:1], 0\ns_load_dwordx8 s[52:59], s[0:1], 64\ns_load_dwordx4 s[60:63], s[0:1], 96")
    if stamp:
        for k in range(9): e.raw(f"s_mov_b32 s{80+2*k}, 0")
        e.raw("s_memrealtime s[80:81]")
    e.valu("v_lshrrev_b32 v1, 6, v0", [1], [0])
    e.valu("v_and_b32 v0, 63, v0", [0], [0])
    e.valu(f"v_readfirstlane_b32 s{sW}, v1", [], [1], "rl")
    e.raw(f"s_and_b32 s{sXcd}, s2, 7\ns_lshr_b32 s66, s2, 3\ns_and_b32 s{sRg}, s66, 3\ns_lshr_b32 s{sHg}, s66, 2")
    ra, rb, rc = rot
    e.raw(f"s_mul_i32 s{sKoff}, s{sW}, {ra}\ns_mul_i32 s66, s{sRg}, {rb}\ns_add_u32 s{sKoff}, s{sKoff}, s66\ns_mul_i32 s66, s{sXcd}, {rc}\ns_add_u32 s{sKoff}, s{sKoff}, s66")
    e.raw(f"s_and_b32 s{sKoff}, s{sKoff}, 7\ns_lshl_b32 s{sKoff}, s{sKoff}, 10")
    e.raw(f"s_lshl_b32 s{sR0}, s{sXcd}, 9\ns_lshl_b32 s66, s{sRg}, 7\ns_add_u32 s{sR0}, s{sR0}, s66\ns_lshl_b32 s66, s{sW}, 4\ns_add_u32 s{sR0}, s{sR0}, s66")
    e.raw(f"s_lshl_b32 s66, s{sR0}, 9\ns_lshl_b32 s67, s{sHg}, 24\ns_add_u32 s66, s66, s67")
    e.valu("v_lshlrev_b32 v1, 4, v0", [1], [0])
    e.valu("v_add_u32 v1, s66, v1", [1], [1])
    for h in range(1, 8): e.valu(f"v_add_u32 v{1+h}, {h<<21}, v1", [1+h], [1])
    e.raw(f"s_lshl_b32 s66, s{sR0}, 8")
    qo = TMP; qx = TMP + 1; qh = TMP + 2; qhx = TMP + 3
    e.valu(f"v_lshlrev_b32 v{vCos}, 3, v0", [vCos], [0])
    e.valu(f"v_xor_b32 v{vSin}, 128, v{vCos}", [vSin], [vCos])
    e.valu(f"v_and_b32 v{qo}, 0xff, v{vCos}", [qo], [vCos])
    e.valu(f"v_and_b32 v{qx}, 0xff, v{vSin}", [qx], [vSin])
    e.valu(f"v_add_u32 v{vCos}, s66, v{vCos}", [vCos], [vCos])
    e.valu(f"v_add_u32 v{vSin}, s66, v{vSin}", [vSin], [vSin])
    e.raw(f"s_lshl_b32 s66, s{sHg}, 3\ns_add_u32 s66, s66, s{sW}\ns_lshl_b32 s66, s66, 8")
    e.valu(f"v_add_u32 v{qh}, s66, v{qo}", [qh], [qo])
    e.valu(f"v_add_u32 v{qhx}, s66, v{qx}", [qhx], [qx])
    e.raw(f"s_mov_b32 s{sK+2}, 0x8000000\ns_mov_b32 s{sK+3}, 0x20000\ns_mov_b32 s{sCur+2}, 0x8000000\ns_mov_b32 s{sCur+3}, 0x20000")
    e.raw(f"s_mov_b32 s{sCos+2}, 0x100000\ns_mov_b32 s{sCos+3}, 0x20000\ns_mov_b32 s{sSin+2}, 0x100000\ns_mov_b32 s{sSin+3}, 0x20000")
    e.raw(f"s_mov_b32 s{sV+2}, 0x8000000\ns_mov_b32 s{sV+3}, 0x20000")
    e.raw("s_waitcnt lgkmcnt(0)")
    e.raw(f"s_mov_b32 s{sCur}, s38\ns_mov_b32 s{sCur+1}, s39\ns_mov_b32 s{sCos}, s54\ns_mov_b32 s{sCos+1}, s55\ns_mov_b32 s{sSin}, s56\ns_mov_b32 s{sSin+1}, s57")
    def adv():
        e.raw(f"s_add_u32 s{sKoff}, s{sKoff}, 1024\ns_and_b32 s{sKoff}, s{sKoff}, 0x1fff")
    def issue_cs(s):
        e.raw(f"s_lshr_b32 s{sCoff}, s{sKoff}, 1" if "cs0" not in exp else f"s_mov_b32 s{sCoff}, 0")
        e.raw(f"buffer_load_dwordx2 {R(cs(s))}, v{vCos}, s[{sCos}:{sCos+3}], s{sCoff} offen {csnt}")
        e.raw(f"buffer_load_dwordx2 {R(cs(s)+2)}, v{vSin}, s[{sSin}:{sSin+3}], s{sCoff} offen {csnt}")
    def issue_k(s, h, srd=sCur):
        e.raw(f"buffer_load_dwordx4 {R(kq(s,h),4)}, v{vK[h]}, s[{srd}:{srd+3}], s{sKoff} offen {pol}")
    QB = TMP + 12
    e.raw(f"global_load_dwordx2 {R(QB)}, v{qh}, s[36:37]")
    e.raw(f"global_load_dwordx2 {R(QB+2)}, v{qhx}, s[36:37]")
    e.raw(f"global_load_dwordx2 {R(QB+4)}, v{qo}, s[50:51]")
    e.raw(f"global_load_dwordx2 {R(QB+6)}, v{qx}, s[50:51]")
    e.raw(f"global_load_dwordx2 {R(QB+8)}, v{qo}, s[52:53]")
    e.raw(f"global_load_dwordx2 {R(QB+10)}, v{qx}, s[52:53]")
    if qbar: e.raw("s_barrier")
    e.raw(f"s_mov_b32 s67, s{sKoff}")
    issue_cs(0)
    for h in range(pre): issue_k(0, h)
    def ring_rest():
        for h in range(pre, HW): issue_k(0, h)
        adv()
        for s in range(1, RD):
            issue_cs(s)
            for h in range(HW): issue_k(s, h)
            adv()
    e.raw(f"s_mov_b32 s{sK}, s38\ns_mov_b32 s{sK+1}, s39\ns_mov_b32 s{sV}, s44\ns_mov_b32 s{sV+1}, s45")
    e.raw(f"s_mov_b32 s{sMask}, 0xffff0000")
    e.raw(f"s_mov_b32 s{sM1}, 0xcccccccc\ns_mov_b32 s{sM1+1}, 0xcccccccc\ns_mov_b32 s{sM0}, 0xaaaaaaaa\ns_mov_b32 s{sM0+1}, 0xaaaaaaaa")
    t0 = TMP + 4; t1 = TMP + 5; t2 = TMP + 6; so = [TMP + 8, TMP + 9]
    e.valu(f"v_bfe_u32 v{t0}, v0, 1, 1", [t0], [0])
    e.valu(f"v_and_b32 v{t1}, 1, v0", [t1], [0])
    e.valu(f"v_lshl_or_b32 v{t0}, v{t1}, 1, v{t0}", [t0], [t0, t1])
    e.raw(f"s_lshr_b32 s66, s67, 10")
    e.valu(f"v_add_u32 v{t0}, s66, v{t0}", [t0], [t0])
    def headbits(dst, tmp):
        e.valu(f"v_bfe_u32 v{dst}, v0, 4, 1", [dst], [0])
        e.valu(f"v_bfe_u32 v{tmp}, v0, 3, 1", [tmp], [0])
        e.valu(f"v_lshl_or_b32 v{dst}, v{tmp}, 1, v{dst}", [dst], [dst, tmp])
        e.valu(f"v_and_b32 v{tmp}, 4, v0", [tmp], [0])
        e.valu(f"v_or_b32 v{dst}, v{dst}, v{tmp}", [dst], [dst, tmp])
    headbits(t1, t2)
    e.valu(f"v_lshlrev_b32 v{t1}, 12, v{t1}", [t1], [t1])
    e.valu(f"v_lshrrev_b32 v{t2}, 5, v0", [t2], [0])
    e.raw(f"s_lshl_b32 s66, s{sHg}, 15\ns_add_u32 s66, s66, s{sR0}")
    e.valu(f"v_add3_u32 v{t1}, v{t1}, v{t2}, s66", [t1], [t1, t2])
    for Ti in range(2):
        e.valu(f"v_add_u32 v{t2}, {4*Ti}, v{t0}", [t2], [t0])
        e.valu(f"v_and_b32 v{t2}, 7, v{t2}", [t2], [t2])
        e.valu(f"v_lshl_add_u32 v{t2}, v{t2}, 1, v{t1}", [t2], [t2, t1])
        e.valu(f"v_lshlrev_b32 v{so[Ti]}, 1, v{t2}", [so[Ti]], [t2])
    if coop:
        for Ti in range(2):
            e.valu(f"v_bfe_u32 v{t2}, v{so[Ti]}, 13, 3", [t2], [so[Ti]])
            e.valu(f"v_and_b32 v{so[Ti]}, 0xff, v{so[Ti]}", [so[Ti]], [so[Ti]])
            e.valu(f"v_lshl_add_u32 v{so[Ti]}, v{t2}, 8, v{so[Ti]}", [so[Ti]], [so[Ti], t2])
        e.raw(f"s_lshl_b32 s66, s{sHg}, 3\ns_add_u32 s66, s66, s{sW}\ns_lshl_b32 s66, s66, 12\ns_and_b32 s68, s{sR0}, 0xffffff80\ns_add_u32 s66, s66, s68\ns_lshl_b32 s66, s66, 1")
        e.valu(f"v_lshlrev_b32 v{TMP+11}, 2, v0", [TMP+11], [0])
        e.valu(f"v_add_u32 v{TMP+10}, s66, v{TMP+11}", [TMP+10], [TMP+11])
        e.raw(f"s_lshl_b32 s66, s{sW}, 8")
        e.valu(f"v_add_u32 v{TMP+11}, s66, v{TMP+11}", [TMP+11], [TMP+11])
    for r in range(80, 88): e.valu(f"v_mov_b32 v{r}, 0", [r], [])
    e.valu(f"v_and_b32 v{vBP}, 32, v0", [vBP], [0])
    e.valu(f"v_lshlrev_b32 v{vBP}, 2, v{vBP}", [vBP], [vBP])
    st(7)
    e.raw(f"s_waitcnt vmcnt({2+pre})")
    st(8)
    if early: ring_rest()
    def unpack(dst, src):
        e.valu(f"v_lshlrev_b32 v{dst}, 16, v{src}", [dst], [src])
        e.valu(f"v_and_b32 v{dst+1}, s{sMask}, v{src}", [dst+1], [src])
        e.valu(f"v_lshlrev_b32 v{dst+2}, 16, v{src+1}", [dst+2], [src+1])
        e.valu(f"v_and_b32 v{dst+3}, s{sMask}, v{src+1}", [dst+3], [src+1])
    def rnd(x, tmp):
        if not emul: return
        e.valu(f"v_cvt_pk_bf16_f32 v{tmp}, v{x}, v{x+1}", [tmp], [])
        e.valu(f"v_cvt_pk_bf16_f32 v{tmp+1}, v{x+2}, v{x+3}", [tmp+1], [])
        unpack(x, tmp)
    A1 = 88; A2 = 92; B1 = 96; B2 = 100; QO = 104; QX = 108; X1 = 112; X2 = 116; Y1 = 120; Y2 = 124; sgn = 128; tp = 130
    unpack(A1, QB+4); unpack(B1, QB+6); unpack(A2, QB+8); unpack(B2, QB+10); unpack(QO, QB); unpack(QX, QB+2)
    e.valu(f"v_and_b32 v{sgn}, 16, v0", [sgn], [0])
    e.valu(f"v_lshlrev_b32 v{sgn}, 27, v{sgn}", [sgn], [sgn])
    for i in range(4): e.valu(f"v_xor_b32 v{B1+i}, v{sgn}, v{B1+i}", [B1+i], [B1+i, sgn])
    e.valu(f"v_xor_b32 v{sgn}, 0x80000000, v{sgn}", [sgn], [sgn])
    for i in range(4): e.valu(f"v_xor_b32 v{A2+i}, v{sgn}, v{A2+i}", [A2+i], [A2+i, sgn])
    for (d, x, y) in ((X1, QO, A1), (X2, QX, A2), (Y1, QX, B1), (Y2, QO, B2)):
        for p in (0, 2): e.valu(f"v_pk_mul_f32 {R(d+p)}, {R(x+p)}, {R(y+p)}", [d+p, d+p+1], [])
    for d in (X1, X2, Y1, Y2): rnd(d, tp)
    for (d, x) in ((X1, X2), (Y1, Y2)):
        for p in (0, 2): e.valu(f"v_pk_add_f32 {R(d+p)}, {R(d+p)}, {R(x+p)}", [d+p, d+p+1], [])
    rnd(X1, tp); rnd(Y1, tp)
    la = 132
    e.valu(f"v_and_b32 v{la}, 31, v0", [la], [0])
    e.valu(f"v_lshlrev_b32 v{la}, 4, v{la}", [la], [la])
    e.raw(f"s_lshl_b32 s66, s{sW}, 10\ns_add_u32 s66, s66, {ABB}")
    e.valu(f"v_add_u32 v{la+1}, s66, v{la}", [la+1], [la])
    e.raw(f"ds_write_b128 v{la+1}, {R(X1,4)}\nds_write_b128 v{la+1}, {R(Y1,4)} offset:512")
    def late():
        if not coop:
            for Ti in range(2):
                for (dst, p) in ((vks, 40), (vkz, 42), (vvs, 46), (vvz, 48)):
                    e.raw(f"global_load_short_d16_hi v{dst[Ti]}, v{so[Ti]}, s[{p}:{p+1}] {scnt}")
        else:
            for k, p in enumerate((40, 42, 46, 48)):
                e.raw(f"global_load_dword v{TMP+12+k}, v{TMP+10}, s[{p}:{p+1}] {scnt}")
        e.raw(f"s_cmp_eq_u32 s{sW}, 0\ns_cbranch_scc0 L_nocas")
        e.raw("s_memrealtime s[68:69]\ns_waitcnt lgkmcnt(0)")
        e.raw("s_mul_i32 s69, s69, 0x9e3779b9\ns_add_u32 s68, s68, s69\ns_or_b32 s68, s68, 1")
        e.raw(f"s_lshl_b32 s69, s{sHg}, 5")
        e.valu("v_mov_b32 v14, s68", [14], [])
        e.valu("v_mov_b32 v15, 0", [15], [])
        e.valu("v_mov_b32 v13, s69", [13], [])
        e.raw("s_mov_b64 exec, 1")
        e.raw("global_atomic_cmpswap v12, v13, v[14:15], s[60:61] sc0")
        e.raw("s_mov_b64 exec, -1")
        e.raw("L_nocas:")
    e.raw("s_waitcnt lgkmcnt(0)\ns_barrier")
    for h in range(HW):
        e.raw(f"ds_read_b128 {R(a_(h),4)}, v{la} offset:{ABB+1024*h}\nds_read_b128 {R(b_(h),4)}, v{la} offset:{ABB+1024*h+512}")
    if not early: ring_rest()
    e.raw("s_waitcnt lgkmcnt(0)")
    st(1)
    e.raw(f"s_mov_b32 s{sIt}, 0")
    real_valu = e.valu
    def fake(text, dst, src_, kind=""):
        if text.startswith("v_cvt_f32_i32") and (dst[0] % 4 == 0): real_valu(text, dst, src_, kind)
    if "novalu" in exp: e.valu = fake
    e.raw(".p2align 6\nL_k:")
    e.raw(f"s_cmp_eq_u32 s{sIt}, 1\ns_cbranch_scc0 L_nolate")
    sv = e.valu; e.valu = real_valu
    late()
    e.valu = sv
    e.raw("L_nolate:")
    if coop:
        e.raw(f"s_cmp_eq_u32 s{sIt}, 2\ns_cbranch_scc0 L_nosw")
        for k in range(4): e.raw(f"ds_write_b32 v{TMP+11}, v{TMP+12+k} offset:{SCB+2048*k}")
        e.raw("s_waitcnt lgkmcnt(0)\nL_nosw:")
    for jj in range(2):
        s = jj % RD
        if RD == 1:
            if jj == 1:
                e.raw(f"s_cmp_eq_u32 s{sIt}, {NIT-1}\ns_cselect_b32 s{sCur}, s{sV}, s{sK}\ns_cselect_b32 s{sCur+1}, s{sV+1}, s{sK+1}")
        else:
            if jj == 0:
                e.raw(f"s_cmp_eq_u32 s{sIt}, {NIT-1}\ns_cselect_b32 s{sCur}, s{sV}, s{sK}\ns_cselect_b32 s{sCur+1}, s{sV+1}, s{sK+1}")
        e.raw(f"s_waitcnt vmcnt({PER*RD-2})")
        unpack(C, cs(s)); unpack(S, cs(s)+2)
        issue_cs(s)
        for hp in range(4):
            hs = (2*hp, 2*hp+1)
            for k, h in enumerate(hs):
                for p in (0, 2):
                    e.valu(f"v_pk_mul_f32 {R(W[k]+p)}, {R(a_(h)+p)}, {R(C+p)}", [W[k]+p, W[k]+p+1], [])
            for k, h in enumerate(hs):
                for p in (0, 2):
                    e.valu(f"v_pk_fma_f32 {R(W[k]+p)}, {R(b_(h)+p)}, {R(S+p)}, {R(W[k]+p)}", [W[k]+p, W[k]+p+1], [])
            for k, h in enumerate(hs):
                x = kq(s, h)
                e.raw(f"s_waitcnt vmcnt({PER*RD-1})")
                for i in range(4): e.valu(f"v_cvt_f32_i32 v{x+i}, v{x+i}", [x+i], [x+i])
                e.valu(f"v_pk_add_f32 {R(SW[k])}, {R(W[k])}, {R(W[k]+2)}", [SW[k], SW[k]+1], [])
                e.valu(f"v_pk_mul_f32 {R(T[k])}, {R(x)}, {R(W[k])}", [T[k], T[k]+1], [])
                e.valu(f"v_pk_fma_f32 {R(T[k])}, {R(x+2)}, {R(W[k]+2)}, {R(T[k])}", [T[k], T[k]+1], [])
                issue_k(s, h)
                e.valu(f"v_add_f32 v{g_[h]}, v{SW[k]}, v{SW[k]+1}", [g_[h]], [])
                e.valu(f"v_add_f32 v{u_[h]}, v{T[k]}, v{T[k]+1}", [u_[h]], [])
        adv()
        if barj and (jj + 1) % barj == 0: e.raw("s_barrier")
        for q in (g_, u_):
            for k in range(4):
                e.valu(f"v_permlane16_swap_b32 v{q[2*k]}, v{q[2*k+1]}", [q[2*k], q[2*k+1]], [q[2*k], q[2*k+1]], "perm")
        for q in (g_, u_):
            for k in range(4):
                e.valu(f"v_add_f32 v{q[2*k]}, v{q[2*k]}, v{q[2*k+1]}", [q[2*k]], [])
        for q in (g_, u_):
            for k in (0, 4):
                e.valu(f"v_add_f32_dpp v{q[k]}, v{q[k]}, v{q[k]} row_ror:8 row_mask:0xf bank_mask:0x3", [q[k]], [q[k]], "dpp")
        for q in (g_, u_):
            for k in (0, 4):
                e.valu(f"v_add_f32_dpp v{q[k]}, v{q[k+2]}, v{q[k+2]} row_ror:8 row_mask:0xf bank_mask:0xc", [q[k]], [q[k+2]], "dpp")
        for (q, cq) in ((g_, Cg), (u_, Cu)):
            d = cq if jj == 0 else q[1]
            e.valu(f"v_add_f32_dpp v{d}, v{q[0]}, v{q[0]} row_half_mirror row_mask:0xf bank_mask:0x5", [d], [q[0]], "dpp")
        for (q, cq) in ((g_, Cg), (u_, Cu)):
            d = cq if jj == 0 else q[1]
            e.valu(f"v_add_f32_dpp v{d}, v{q[4]}, v{q[4]} row_half_mirror row_mask:0xf bank_mask:0xa", [d], [q[4]], "dpp")
        if jj == 1:
            for n, (q, cq, Rq) in enumerate(((g_, Cg, Rg), (u_, Cu, Ru))):
                X = cq; Y = q[1]
                e.valu(f"v_cndmask_b32 v{Dt[2*n]}, v{Y}, v{X}, s[{sM1}:{sM1+1}]", [Dt[2*n]], [])
                e.valu(f"v_cndmask_b32 v{Dt[2*n+1]}, v{X}, v{Y}, s[{sM1}:{sM1+1}]", [Dt[2*n+1]], [])
                for i in (3, 2, 1): e.valu(f"v_mov_b32 v{Rq[i]}, v{Rq[i-1]}", [Rq[i]], [])
            for n, Rq in enumerate((Rg, Ru)):
                e.valu(f"v_add_f32_dpp v{Rq[0]}, v{Dt[2*n]}, v{Dt[2*n+1]} quad_perm:[2,3,0,1] row_mask:0xf bank_mask:0xf", [Rq[0]], [Dt[2*n]], "dpp")
    e.raw(f"s_add_u32 s{sIt}, s{sIt}, 1\ns_cmp_lt_u32 s{sIt}, {NIT}\ns_cbranch_scc1 L_k")
    e.valu = real_valu
    st(2)
    if coop:
        for Ti in range(2):
            for k, dst in enumerate((vks, vkz, vvs, vvz)):
                e.raw(f"ds_read_u16_d16_hi v{dst[Ti]}, v{so[Ti]} offset:{SCB+2048*k}")
    e.raw(f"s_cmp_eq_u32 s{sW}, 0\ns_cbranch_scc0 L_nopub")
    e.valu("v_cmp_eq_u32 vcc, 0, v12", [], [])
    e.raw("s_nop 1")
    e.valu("v_cndmask_b32 v12, v12, v14, vcc", [12], [])
    e.valu(f"v_mov_b32 v13, {NON}", [13], [])
    e.raw("s_mov_b64 exec, 1")
    e.raw("ds_write_b32 v13, v12")
    e.raw("s_mov_b64 exec, -1")
    e.raw("s_waitcnt lgkmcnt(0)")
    e.raw("L_nopub:")
    Lu = [112, 113]; Lg = [114, 115]
    for (Rq, Lq, tt) in ((Rg, Lg, (116, 117, 118, 119)), (Ru, Lu, (120, 121, 122, 123))):
        for Ti in range(2):
            X = Rq[3-2*Ti]; Y = Rq[2-2*Ti]
            e.valu(f"v_cndmask_b32 v{tt[2*Ti]}, v{Y}, v{X}, s[{sM0}:{sM0+1}]", [tt[2*Ti]], [])
            e.valu(f"v_cndmask_b32 v{tt[2*Ti+1]}, v{X}, v{Y}, s[{sM0}:{sM0+1}]", [tt[2*Ti+1]], [])
    for (Rq, Lq, tt) in ((Rg, Lg, (116, 117, 118, 119)), (Ru, Lu, (120, 121, 122, 123))):
        for Ti in range(2):
            e.valu(f"v_add_f32_dpp v{Lq[Ti]}, v{tt[2*Ti]}, v{tt[2*Ti+1]} quad_perm:[1,0,3,2] row_mask:0xf bank_mask:0xf", [Lq[Ti]], [tt[2*Ti]], "dpp")
    e.raw("s_waitcnt lgkmcnt(0)")
    cbits = struct.unpack("<I", struct.pack("<f", math.log2(math.e) / math.sqrt(128.0)))[0]
    e.raw(f"s_mov_b32 s66, {cbits:#x}")
    for Ti in range(2):
        e.valu(f"v_fma_f32 v{Lu[Ti]}, -v{vkz[Ti]}, v{Lg[Ti]}, v{Lu[Ti]}", [Lu[Ti]], [])
        e.valu(f"v_mul_f32 v{vks[Ti]}, s66, v{vks[Ti]}", [vks[Ti]], [])
    for Ti in range(2):
        e.valu(f"v_mul_f32 v{Lu[Ti]}, v{Lu[Ti]}, v{vks[Ti]}", [Lu[Ti]], [])
    vm = 116; vl = 117; vcr = 118; tx = 119; P = [120, 121]
    def allred(r, op, tmp):
        e.valu(f"{op}_dpp v{r}, v{r}, v{r} quad_perm:[1,0,3,2] row_mask:0xf bank_mask:0xf", [r], [r], "dpp")
        e.valu(f"{op}_dpp v{r}, v{r}, v{r} quad_perm:[2,3,0,1] row_mask:0xf bank_mask:0xf", [r], [r], "dpp")
        e.valu(f"v_mov_b32 v{tmp}, v{r}", [tmp], [r])
        e.valu(f"v_permlane32_swap_b32 v{tmp}, v{r}", [tmp, r], [tmp, r], "perm")
        e.valu(f"{op} v{r}, v{r}, v{tmp}", [r], [r, tmp])
    e.valu(f"v_max_f32 v{vm}, v{Lu[0]}, v{Lu[1]}", [vm], [])
    allred(vm, "v_max_f32", tx)
    for Ti in range(2): e.valu(f"v_sub_f32 v{P[Ti]}, v{Lu[Ti]}, v{vm}", [P[Ti]], [])
    for Ti in range(2): e.valu(f"v_exp_f32 v{P[Ti]}, v{P[Ti]}", [P[Ti]], [P[Ti]], "trans")
    e.valu(f"v_add_f32 v{vl}, v{P[0]}, v{P[1]}", [vl], [P[0], P[1]])
    Q = [124, 125, 126, 127]
    e.valu(f"v_mul_f32 v{Q[0]}, v{P[0]}, v{vvs[0]}", [Q[0]], [P[0]])
    e.valu(f"v_mul_f32 v{Q[2]}, v{P[1]}, v{vvs[1]}", [Q[2]], [P[1]])
    e.valu(f"v_mul_f32 v{vcr}, v{Q[0]}, v{vvz[0]}", [vcr], [])
    e.valu(f"v_mov_b32 v{Q[1]}, v{Q[0]}", [Q[1]], [])
    e.valu(f"v_fmac_f32 v{vcr}, v{Q[2]}, v{vvz[1]}", [vcr], [])
    e.valu(f"v_mov_b32 v{Q[3]}, v{Q[2]}", [Q[3]], [])
    allred(vl, "v_add_f32", tx)
    allred(vcr, "v_add_f32", 122)
    def acc(h): return 16 + 4*h
    for r in range(16, 48): e.valu(f"v_mov_b32 v{r}, 0", [r], [])
    PB = 88
    def vbody(last):
        for jj in range(2):
            for h in range(HW):
                src = (h & 1)*16 + ((h >> 1) & 1)*8 + (h >> 2)*4 + jj*2
                e.raw(f"ds_bpermute_b32 v{PB+8*jj+h}, v{vBP}, v{Q[0]} offset:{4*src}")
        e.valu(f"v_xor_b32 v{vBP}, 4, v{vBP}", [vBP], [])
        for jj in range(2):
            s = jj % RD
            do_issue = (not last) or (6 + jj + RD < 8)
            for h in range(HW):
                x = kq(s, h); i_ = 8*jj + h
                if not last: wv = 8*RD - 1
                else:
                    if RD == 1: wv = 7 if jj == 0 else 7 - h
                    else: wv = 15 - i_
                e.raw(f"s_waitcnt vmcnt({wv}) lgkmcnt({15-i_})")
                for i in range(4): e.valu(f"v_cvt_f32_i32 v{x+i}, v{x+i}", [x+i], [x+i])
                pr = PB + i_; pe = pr & ~1
                sel = "op_sel_hi:[1,0,1]" if pr == pe else "op_sel:[0,1,0] op_sel_hi:[1,1,1]"
                for p in (0, 2):
                    e.valu(f"v_pk_fma_f32 {R(acc(h)+p)}, {R(x+p)}, {R(pe)}, {R(acc(h)+p)} {sel}", [acc(h)+p, acc(h)+p+1], [])
                if do_issue: issue_k(s, h, sV)
            if do_issue:
                adv()
                if barj and (jj + 1) % barj == 0: e.raw("s_barrier")
        if not last:
            for i in range(3): e.valu(f"v_mov_b32 v{Q[i]}, v{Q[i+1]}", [Q[i]], [])
    e.raw(f"s_mov_b32 s{sIt}, 0")
    if "novalu" in exp: e.valu = fake
    e.raw(".p2align 6\nL_v:")
    vbody(False)
    e.raw(f"s_add_u32 s{sIt}, s{sIt}, 1\ns_cmp_lt_u32 s{sIt}, {NIT-1}\ns_cbranch_scc1 L_v")
    vbody(True)
    e.valu = real_valu
    st(3)
    ad = 48; cc = [49, 50, 51, 52]; la = 53; hb = 54; t3 = 55
    e.valu(f"v_lshrrev_b32 v{ad}, 5, v0", [ad], [])
    e.valu(f"v_lshlrev_b32 v{ad}, 6, v{ad}", [ad], [])
    for k in range(4): e.raw(f"ds_bpermute_b32 v{cc[k]}, v{ad}, v{vcr} offset:{(k&1)*32 + (k>>1)*16}")
    for k in range(4):
        for i in range(4):
            x = acc(2*k) + i; y = acc(2*k+1) + i
            e.valu(f"v_permlane32_swap_b32 v{x}, v{y}", [x, y], [x, y], "perm")
    for k in range(4):
        for i in range(4):
            x = acc(2*k) + i; y = acc(2*k+1) + i
            e.valu(f"v_add_f32 v{x}, v{x}, v{y}", [x], [])
    e.raw(f"s_lshl_b32 s66, s{sW}, 12")
    e.valu(f"v_lshlrev_b32 v{la}, 4, v0", [la], [])
    e.valu(f"v_add_u32 v{la}, s66, v{la}", [la], [])
    headbits(hb, t3)
    e.raw(f"s_lshl_b32 s66, s{sW}, 2\ns_add_u32 s66, s66, {MLB}")
    e.valu(f"v_lshlrev_b32 v{hb}, 5, v{hb}", [hb], [])
    e.valu(f"v_add_u32 v{hb}, s66, v{hb}", [hb], [])
    e.raw(f"ds_write_b32 v{hb}, v{vm}\nds_write_b32 v{hb}, v{vl} offset:256")
    e.raw("s_waitcnt lgkmcnt(2)")
    for k in range(4):
        for i in range(4):
            e.valu(f"v_sub_f32 v{acc(2*k)+i}, v{acc(2*k)+i}, v{cc[k]}", [acc(2*k)+i], [])
        e.raw(f"ds_write_b128 v{la}, {R(acc(2*k),4)} offset:{1024*k}")
    e.raw("s_waitcnt lgkmcnt(0)\ns_barrier")
    st(4)
    g = 24; dq = 25; aa = 26; ma = 27
    e.valu(f"v_lshrrev_b32 v{g}, 5, v0", [g], [])
    e.valu(f"v_and_b32 v{dq}, 31, v0", [dq], [])
    e.valu(f"v_lshlrev_b32 v{aa}, 4, v{dq}", [aa], [])
    e.raw(f"s_lshl_b32 s66, s{sW}, 9")
    e.valu(f"v_lshl_add_u32 v{aa}, v{g}, 14, v{aa}", [aa], [])
    e.valu(f"v_add_u32 v{aa}, s66, v{aa}", [aa], [])
    e.raw(f"s_lshl_b32 s66, s{sW}, 5\ns_add_u32 s66, s66, {MLB}")
    e.valu(f"v_lshlrev_b32 v{ma}, 4, v{g}", [ma], [])
    e.valu(f"v_add_u32 v{ma}, s66, v{ma}", [ma], [])
    MM = 32; LL = 36; AA = 64
    e.valu(f"v_mov_b32 v28, {NON}", [28], [])
    e.raw("ds_read_b32 v28, v28")
    e.raw(f"ds_read_b128 {R(MM,4)}, v{ma}\nds_read_b128 {R(LL,4)}, v{ma} offset:256")
    for i in range(4): e.raw(f"ds_read_b128 {R(AA+4*i,4)}, v{aa} offset:{SLAB*i}")
    def merge(n, MM, LL, AA, mstride=1, waits=None):
        M = 12; L = 13; tmp = 14
        e.valu(f"v_max3_f32 v{M}, v{MM}, v{MM+mstride}, v{MM+2*mstride}", [M], [])
        i = 3
        while i + 1 < n:
            e.valu(f"v_max3_f32 v{M}, v{M}, v{MM+i*mstride}, v{MM+(i+1)*mstride}", [M], []); i += 2
        if i < n: e.valu(f"v_max_f32 v{M}, v{M}, v{MM+i*mstride}", [M], [])
        e.valu(f"v_mov_b32 v{tmp}, v{M}", [tmp], [])
        e.valu(f"v_permlane32_swap_b32 v{tmp}, v{M}", [tmp, M], [tmp, M], "perm")
        e.valu(f"v_max_f32 v{M}, v{M}, v{tmp}", [M], [])
        for i in range(n): e.valu(f"v_sub_f32 v{MM+i*mstride}, v{MM+i*mstride}, v{M}", [MM+i*mstride], [])
        for i in range(n): e.valu(f"v_exp_f32 v{MM+i*mstride}, v{MM+i*mstride}", [MM+i*mstride], [MM+i*mstride], "trans")
        e.valu(f"v_mul_f32 v{L}, v{MM}, v{LL}", [L], [MM])
        for i in range(1, n): e.valu(f"v_fmac_f32 v{L}, v{MM+i*mstride}, v{LL+i*mstride}", [L], [MM+i*mstride])
        if waits: e.raw(waits)
        for i in range(n):
            for c in range(4):
                if i == 0: e.valu(f"v_mul_f32 v{8+c}, v{MM}, v{AA+c}", [8+c], [])
                else: e.valu(f"v_fmac_f32 v{8+c}, v{MM+i*mstride}, v{AA+4*i+c}", [8+c], [])
        for k, r in enumerate((8, 9, 10, 11, 13)): e.valu(f"v_mov_b32 v{16+k}, v{r}", [16+k], [])
        for k, r in enumerate((8, 9, 10, 11, 13)): e.valu(f"v_permlane32_swap_b32 v{16+k}, v{r}", [16+k, r], [16+k, r], "perm")
        for k, r in enumerate((8, 9, 10, 11, 13)): e.valu(f"v_add_f32 v{r}, v{r}, v{16+k}", [r], [])
    e.raw(f"s_waitcnt lgkmcnt(4)")
    e.valu("v_not_b32 v29, v28", [29], [])
    merge(4, MM, LL, AA, 1, "s_waitcnt lgkmcnt(0)")
    e.raw(f"s_lshl_b32 s66, s{sHg}, 3\ns_add_u32 s66, s66, s{sW}")
    e.raw(f"s_lshl_b32 s67, s{sXcd}, 2\ns_add_u32 s67, s67, s{sRg}")
    e.raw(f"s_lshl_b32 s72, s66, 5\ns_add_u32 s72, s72, s67")
    e.raw("s_mov_b32 s76, s62\ns_mov_b32 s77, s63\ns_mov_b32 s78, 0x300000\ns_mov_b32 s79, 0x20000")
    e.raw("s_lshl_b32 s73, s72, 10\ns_lshl_b32 s74, s72, 4\ns_add_u32 s74, s74, 0x200000")
    e.raw("s_mov_b32 s70, 0\ns_mov_b32 s71, -1")
    e.valu("v_cndmask_b32 v16, v8, v10, s[70:71]", [16], [])
    e.valu("v_mov_b32 v17, v28", [17], [])
    e.valu("v_cndmask_b32 v18, v9, v11, s[70:71]", [18], [])
    e.valu("v_mov_b32 v19, v29", [19], [])
    e.valu("v_mov_b32 v20, v12", [20], [])
    e.valu("v_mov_b32 v21, v28", [21], [])
    e.valu("v_mov_b32 v22, v13", [22], [])
    e.valu("v_mov_b32 v23, v29", [23], [])
    e.valu(f"v_lshlrev_b32 v{aa}, 5, v{dq}", [aa], [])
    e.valu(f"v_lshl_add_u32 v{aa}, v{g}, 4, v{aa}", [aa], [])
    e.valu(f"v_mov_b32 v{ma}, 0", [ma], [])
    e.raw(f"buffer_store_dwordx4 v[16:19], v{aa}, s[76:79], s73 offen sc1")
    e.raw("s_mov_b64 exec, 1")
    e.raw(f"buffer_store_dwordx4 v[20:23], v{ma}, s[76:79], s74 offen sc1")
    e.raw("s_mov_b64 exec, -1")
    st(5)
    e.raw(f"s_and_b32 s67, s{sHg}, 3\ns_cmp_eq_u32 s67, s{sRg}\ns_cbranch_scc0 L_dump")
    e.raw(f"s_lshl_b32 s66, s{sHg}, 3\ns_add_u32 s66, s66, s{sXcd}")
    e.raw(f"s_lshl_b32 s72, s66, 5\ns_lshl_b32 s67, s{sW}, 2\ns_add_u32 s72, s72, s67")
    e.raw("s_lshl_b32 s73, s72, 10\ns_lshl_b32 s74, s72, 4\ns_add_u32 s74, s74, 0x200000")
    e.valu(f"v_and_b32 v{ma}, 3, v0", [ma], [])
    e.valu(f"v_lshlrev_b32 v{ma}, 4, v{ma}", [ma], [])
    D0 = 32
    e.raw("s_mov_b32 s75, 0")
    e.raw("L_poll:")
    for i in range(4):
        e.raw(f"s_bitcmp1_b32 s75, {i}\ns_cbranch_scc1 L_sk{i}")
        e.raw(f"buffer_load_dwordx4 {R(D0+4*i,4)}, v{aa}, s[76:79], s73 offen offset:{1024*i} sc1")
        e.raw(f"L_sk{i}:")
    e.raw(f"buffer_load_dwordx4 v[48:51], v{ma}, s[76:79], s74 offen sc1")
    e.raw("s_waitcnt vmcnt(0)")
    for i in range(5):
        e.valu(f"v_cmp_ne_u32 vcc, v{D0+4*i+1}, v28", [], [])
        e.valu(f"v_cmp_ne_u32 s[70:71], v{D0+4*i+3}, v29", [], [])
        e.raw("s_or_b64 vcc, vcc, s[70:71]")
        e.raw(f"s_cmp_eq_u64 vcc, 0\ns_cselect_b32 s67, {1<<i}, 0\ns_or_b32 s75, s75, s67")
    e.raw("s_cmp_eq_u32 s75, 31\ns_cbranch_scc1 L_pdone")
    if sleep: e.raw(f"s_sleep {sleep}")
    e.raw("s_and_b32 s75, s75, 15\ns_branch L_poll")
    e.raw("L_pdone:")
    e.valu("v_max_f32_dpp v52, v48, v48 quad_perm:[1,0,3,2] row_mask:0xf bank_mask:0xf", [52], [48], "dpp")
    e.valu("v_max_f32_dpp v52, v52, v52 quad_perm:[2,3,0,1] row_mask:0xf bank_mask:0xf", [52], [52], "dpp")
    e.valu("v_sub_f32 v53, v48, v52", [53], [])
    e.valu("v_exp_f32 v53, v53", [53], [53], "trans")
    e.valu("v_mul_f32 v54, v53, v50", [54], [53])
    for i in range(4):
        e.valu(f"v_mov_b32_dpp v{56+i}, v53 quad_perm:[{i},{i},{i},{i}] row_mask:0xf bank_mask:0xf", [56+i], [53], "dpp")
    e.valu("v_add_f32_dpp v54, v54, v54 quad_perm:[1,0,3,2] row_mask:0xf bank_mask:0xf", [54], [54], "dpp")
    e.valu(f"v_mul_f32 v60, v56, v{D0}", [60], [])
    e.valu(f"v_mul_f32 v61, v56, v{D0+2}", [61], [])
    e.valu("v_add_f32_dpp v54, v54, v54 quad_perm:[2,3,0,1] row_mask:0xf bank_mask:0xf", [54], [54], "dpp")
    for i in range(1, 4):
        e.valu(f"v_fmac_f32 v60, v{56+i}, v{D0+4*i}", [60], [])
        e.valu(f"v_fmac_f32 v61, v{56+i}, v{D0+4*i+2}", [61], [])
    e.raw(f"s_lshl_b32 s67, s{sW}, 9\ns_add_u32 s67, s67, {ABB}")
    e.valu("v_lshlrev_b32 v62, 3, v0", [62], [])
    e.valu("v_add_u32 v63, s67, v62", [63], [])
    e.raw(f"s_lshl_b32 s67, s{sW}, 2\ns_add_u32 s67, s67, {ABB+4096}")
    e.valu("v_mov_b32 v55, s67", [55], [])
    e.raw("ds_write_b64 v63, v[60:61]\nds_write_b32 v55, v52\nds_write_b32 v55, v54 offset:32")
    e.raw("s_waitcnt lgkmcnt(0)\ns_barrier")
    e.raw(f"s_cmp_eq_u32 s{sW}, 0\ns_cbranch_scc0 L_dump")
    e.valu(f"v_mov_b32 v55, {ABB+4096}", [55], [])
    e.raw("ds_read_b128 v[32:35], v55\nds_read_b128 v[36:39], v55 offset:16\nds_read_b128 v[40:43], v55 offset:32\nds_read_b128 v[44:47], v55 offset:48")
    for i in range(8): e.raw(f"ds_read_b64 {R(64+2*i)}, v62 offset:{ABB+512*i}")
    e.raw("s_waitcnt lgkmcnt(8)")
    e.valu("v_max3_f32 v12, v32, v33, v34", [12], [])
    e.valu("v_max3_f32 v12, v12, v35, v36", [12], [])
    e.valu("v_max3_f32 v12, v12, v37, v38", [12], [])
    e.valu("v_max_f32 v12, v12, v39", [12], [])
    for i in range(8): e.valu(f"v_sub_f32 v{32+i}, v{32+i}, v12", [32+i], [])
    for i in range(8): e.valu(f"v_exp_f32 v{32+i}, v{32+i}", [32+i], [32+i], "trans")
    e.valu("v_mul_f32 v13, v32, v40", [13], [32])
    for i in range(1, 8): e.valu(f"v_fmac_f32 v13, v{32+i}, v{40+i}", [13], [32+i])
    e.valu("v_rcp_f32 v13, v13", [13], [13], "trans")
    e.raw("s_waitcnt lgkmcnt(0)")
    e.valu("v_mul_f32 v8, v32, v64", [8], [])
    e.valu("v_mul_f32 v9, v32, v65", [9], [])
    for i in range(1, 8):
        e.valu(f"v_fmac_f32 v8, v{32+i}, v{64+2*i}", [8], [])
        e.valu(f"v_fmac_f32 v9, v{32+i}, v{65+2*i}", [9], [])
    e.valu("v_mul_f32 v8, v8, v13", [8], [13])
    e.valu("v_mul_f32 v9, v9, v13", [9], [13])
    e.valu("v_cvt_pk_bf16_f32 v8, v8, v9", [8], [])
    e.raw("s_lshl_b32 s73, s66, 8")
    e.raw("s_mov_b32 s76, s58\ns_mov_b32 s77, s59\ns_mov_b32 s78, 0x4000\ns_mov_b32 s79, 0x20000")
    e.valu(f"v_lshrrev_b32 v{aa}, 2, v{aa}", [aa], [])
    e.raw(f"buffer_store_dword v8, v{aa}, s[76:79], s73 offen")
    if stamp: e.raw("s_waitcnt vmcnt(0)")
    st(6)
    e.raw("L_dump:")
    dump()
    e.raw("L_end:\ns_endpgm")
    e.raw(f""".section .rodata,"a"
.p2align 6
.amdhsa_kernel {KN}
.amdhsa_next_free_vgpr {NV}
.amdhsa_next_free_sgpr 102
.amdhsa_accum_offset {NV}
.amdhsa_group_segment_fixed_size 0
.amdhsa_kernarg_size 112
.amdhsa_user_sgpr_count 2
.amdhsa_user_sgpr_kernarg_segment_ptr 1
.amdhsa_system_sgpr_workgroup_id_x 1
.amdhsa_float_denorm_mode_32 3
.end_amdhsa_kernel""")
    return e.text()

if __name__ == "__main__":
    ap = argparse.ArgumentParser()
    ap.add_argument("--pol", default="nt"); ap.add_argument("-o"); ap.add_argument("--stamp", action="store_true")
    ap.add_argument("--RD", type=int, default=1); ap.add_argument("--barj", type=int, default=1)
    ap.add_argument("--rot", default="3,1,1"); ap.add_argument("--exp", default=""); ap.add_argument("--noqbar", action="store_true"); ap.add_argument("--sleep", type=int, default=0); ap.add_argument("--pre", type=int, default=4); ap.add_argument("--scnt", default=""); ap.add_argument("--csnt", default=""); ap.add_argument("--noearly", action="store_true"); ap.add_argument("--nocoop", action="store_true")
    a = ap.parse_args()
    open(a.o, "w").write(gen(RD=a.RD, pol=a.pol, stamp=a.stamp, barj=a.barj, rot=tuple(int(x) for x in a.rot.split(",")), exp=a.exp, qbar=not a.noqbar, sleep=a.sleep, pre=a.pre, scnt=a.scnt, csnt=a.csnt, early=not a.noearly, coop=not a.nocoop))
```

```python
import sys, argparse, re, math, struct
from gen import Em, R, KN

def gen(pol="nt", stamp=False, rot=(5, 3, 7), exp="", emul=True, sleep=0, scnt="nt", csnt="nt", barq=4, pre=8, order="qck"):
    e = Em()
    NW = 8; NIT = 4; RS = 4
    ABB = 0; SCB = 8192; SLB = 16384; MLB = 24576; NON = 24832; CSB = 25600
    LDS = CSB + 65536
    e.raw(f"; @launch grid=(256,1,1) block=({NW*64},1,1) lds={LDS}")
    e.raw('.amdgcn_target "amdgcn-amd-amdhsa--gfx950"\n.text')
    e.raw(f".globl {KN}\n.p2align 8\n.type {KN},@function\n{KN}:")
    vK = [1, 2]; vCa = 3; vSa = 4; vBP = 5; vCA = 6; vSA = 7
    def a_(h): return 16 + 8*h
    def b_(h): return 20 + 8*h
    vks = [32, 33]; vkz = [34, 35]; vvs = [36, 37]; vvz = [38, 39]
    C = 40; S = 44; W = [48, 56]; T = [52, 60]; SW = [54, 62]
    u_ = [64, 65]; g_ = [66, 67]
    Au = list(range(68, 76)); Ag = list(range(76, 84))
    Dt = [84, 85, 86, 87]
    Ru = [88, 89, 90, 91]; Rg = [92, 93, 94, 95]
    CSR = [96, 100]
    RING = 104
    def kq(s, h): return RING + 8*s + 4*h
    TMP = 140
    NV = 256
    sK = 4; sV = 8; sCos = 12; sSin = 16; sCur = 20
    sKoff = 24; sCoff = 25; sIt = 26; sMask = 27; sM1 = 28; sM0 = 30
    sW = 3; sHg = 32; sRg = 33; sXcd = 34; sR0 = 35; sHp = 64; sRw = 65
    def st(k):
        if stamp: e.raw(f"s_memrealtime s[{80+2*k}:{81+2*k}]\ns_waitcnt lgkmcnt(0)")
    def dump():
        if not stamp: return
        e.raw("s_mov_b64 exec, 1")
        e.raw(f"s_lshl_b32 s99, s2, 3\ns_add_u32 s99, s99, s{sW}\ns_lshl_b32 s99, s99, 6\ns_add_u32 s99, s99, 0x400000")
        e.raw("s_mov_b32 s76, s62\ns_mov_b32 s77, s63\ns_mov_b32 s78, 0x800000\ns_mov_b32 s79, 0x20000")
        e.raw("v_mov_b32 v250, 0")
        e.raw("s_getreg_b32 s98, hwreg(HW_REG_XCC_ID)")
        for k in range(10):
            e.raw(f"v_mov_b32 v251, s{80+2*k}\nbuffer_store_dword v251, v250, s[76:79], s99 offen offset:{4*k}\ns_nop 1")
        e.raw("s_mov_b64 exec, -1")
    e.raw("s_cmp_ge_u32 s2, 256\ns_cbranch_scc1 L_end")
    e.raw("s_load_dwordx16 s[36:51], s[0:1], 0\ns_load_dwordx8 s[52:59], s[0:1], 64\ns_load_dwordx4 s[60:63], s[0:1], 96")
    if stamp:
        for k in range(9): e.raw(f"s_mov_b32 s{80+2*k}, 0")
        e.raw("s_memrealtime s[80:81]")
    e.valu("v_lshrrev_b32 v1, 6, v0", [1], [0])
    e.valu("v_and_b32 v0, 63, v0", [0], [0])
    e.valu(f"v_readfirstlane_b32 s{sW}, v1", [], [1], "rl")
    e.raw(f"s_and_b32 s{sXcd}, s2, 7\ns_lshr_b32 s66, s2, 3\ns_and_b32 s{sRg}, s66, 3\ns_lshr_b32 s{sHg}, s66, 2")
    e.raw(f"s_and_b32 s{sHp}, s{sW}, 3\ns_lshr_b32 s{sRw}, s{sW}, 2")
    ra, rb, rc = rot
    e.raw(f"s_mul_i32 s{sKoff}, s{sW}, {ra}\ns_mul_i32 s66, s{sRg}, {rb}\ns_add_u32 s{sKoff}, s{sKoff}, s66\ns_mul_i32 s66, s{sXcd}, {rc}\ns_add_u32 s{sKoff}, s{sKoff}, s66")
    e.raw(f"s_and_b32 s{sKoff}, s{sKoff}, 31\ns_lshl_b32 s{sKoff}, s{sKoff}, 10")
    e.raw(f"s_lshl_b32 s{sR0}, s{sXcd}, 9\ns_lshl_b32 s66, s{sRg}, 7\ns_add_u32 s{sR0}, s{sR0}, s66")
    e.raw(f"s_lshl_b32 s66, s{sRw}, 6\ns_add_u32 s66, s66, s{sR0}\ns_lshl_b32 s66, s66, 9\ns_lshl_b32 s67, s{sHg}, 24\ns_add_u32 s66, s66, s67\ns_lshl_b32 s67, s{sHp}, 22\ns_add_u32 s66, s66, s67")
    l16 = TMP + 4
    e.valu(f"v_lshlrev_b32 v{l16}, 4, v0", [l16], [0])
    e.valu(f"v_add_u32 v1, s66, v{l16}", [1], [l16])
    e.valu(f"v_add_u32 v2, {1<<21}, v1", [2], [1])
    qo = TMP; qx = TMP + 1; qh = TMP + 2; qhx = TMP + 3; csg = TMP + 5
    e.valu(f"v_lshlrev_b32 v{vCa}, 3, v0", [vCa], [0])
    e.valu(f"v_xor_b32 v{vSa}, 128, v{vCa}", [vSa], [vCa])
    e.valu(f"v_and_b32 v{qo}, 0xff, v{vCa}", [qo], [vCa])
    e.valu(f"v_and_b32 v{qx}, 0xff, v{vSa}", [qx], [vSa])
    e.raw(f"s_lshl_b32 s66, s{sHg}, 3\ns_add_u32 s66, s66, s{sW}\ns_lshl_b32 s66, s66, 8")
    e.valu(f"v_add_u32 v{qh}, s66, v{qo}", [qh], [qo])
    e.valu(f"v_add_u32 v{qhx}, s66, v{qx}", [qhx], [qx])
    e.raw(f"s_lshl_b32 s66, s{sW}, 4\ns_add_u32 s66, s66, s{sR0}\ns_lshl_b32 s66, s66, 8")
    e.valu(f"v_add_u32 v{csg}, s66, v{l16}", [csg], [l16])
    e.raw(f"s_lshl_b32 s66, s{sRw}, 14\ns_add_u32 s66, s66, {CSB}\ns_add_u32 s67, s66, 32768")
    e.valu(f"v_add_u32 v{vCa}, s66, v{vCa}", [vCa], [vCa])
    e.valu(f"v_add_u32 v{vSa}, s67, v{vSa}", [vSa], [vSa])
    e.raw(f"s_mov_b32 s{sK+2}, 0x8000000\ns_mov_b32 s{sK+3}, 0x20000\ns_mov_b32 s{sCur+2}, 0x8000000\ns_mov_b32 s{sCur+3}, 0x20000")
    e.raw(f"s_mov_b32 s{sCos+2}, 0x100000\ns_mov_b32 s{sCos+3}, 0x20000\ns_mov_b32 s{sSin+2}, 0x100000\ns_mov_b32 s{sSin+3}, 0x20000")
    e.raw(f"s_mov_b32 s{sV+2}, 0x8000000\ns_mov_b32 s{sV+3}, 0x20000")
    e.raw(f"s_lshl_b32 s68, s{sW}, 12\ns_add_u32 s68, s68, {CSB}\ns_add_u32 s69, s68, 32768")
    e.raw("s_waitcnt lgkmcnt(0)")
    e.raw(f"s_mov_b32 s{sCur}, s38\ns_mov_b32 s{sCur+1}, s39\ns_mov_b32 s{sCos}, s54\ns_mov_b32 s{sCos+1}, s55\ns_mov_b32 s{sSin}, s56\ns_mov_b32 s{sSin+1}, s57")
    def adv():
        e.raw(f"s_add_u32 s{sKoff}, s{sKoff}, 1024\ns_and_b32 s{sKoff}, s{sKoff}, 0x7fff")
    def issue_k(s, h, srd=sCur):
        e.raw(f"buffer_load_dwordx4 {R(kq(s,h),4)}, v{vK[h]}, s[{srd}:{srd+3}], s{sKoff} offen {pol}")
    QB = TMP + 12
    def qloads():
        e.raw(f"global_load_dwordx2 {R(QB)}, v{qh}, s[36:37]")
        e.raw(f"global_load_dwordx2 {R(QB+2)}, v{qhx}, s[36:37]")
        e.raw(f"global_load_dwordx2 {R(QB+4)}, v{qo}, s[50:51]")
        e.raw(f"global_load_dwordx2 {R(QB+6)}, v{qx}, s[50:51]")
        e.raw(f"global_load_dwordx2 {R(QB+8)}, v{qo}, s[52:53]")
        e.raw(f"global_load_dwordx2 {R(QB+10)}, v{qx}, s[52:53]")
    def csloads():
        e.raw("s_mov_b32 m0, s68\ns_nop 0")
        for i in range(4): e.raw(f"buffer_load_dwordx4 v{csg}, s[{sCos}:{sCos+3}], 0 offen offset:{1024*i} {csnt} lds")
        e.raw("s_mov_b32 m0, s69\ns_nop 0")
        for i in range(4): e.raw(f"buffer_load_dwordx4 v{csg}, s[{sSin}:{sSin+3}], 0 offen offset:{1024*i} {csnt} lds")
    kiss = [0]
    def kloads(n):
        for _ in range(n):
            i = kiss[0]; kiss[0] += 1
            issue_k(i // 2, i % 2)
            if i % 2: adv()
    e.raw(f"s_mov_b32 s67, s{sKoff}")
    qloads()
    csloads()
    kloads(pre)
    e.raw(f"s_mov_b32 s{sK}, s38\ns_mov_b32 s{sK+1}, s39\ns_mov_b32 s{sV}, s44\ns_mov_b32 s{sV+1}, s45")
    e.raw(f"s_mov_b32 s{sMask}, 0xffff0000")
    e.raw(f"s_mov_b32 s{sM1}, 0xcccccccc\ns_mov_b32 s{sM1+1}, 0xcccccccc\ns_mov_b32 s{sM0}, 0xaaaaaaaa\ns_mov_b32 s{sM0+1}, 0xaaaaaaaa")
    t0 = TMP + 6; t1 = TMP + 7; t2 = TMP + 8; so = [TMP + 24, TMP + 25]; sg = TMP + 26; sl = TMP + 27
    e.valu(f"v_bfrev_b32 v{t0}, v0", [t0], [0])
    e.valu(f"v_lshrrev_b32 v{t0}, 28, v{t0}", [t0], [t0])
    e.raw(f"s_lshr_b32 s66, s67, 10")
    e.valu(f"v_add_u32 v{t0}, s66, v{t0}", [t0], [t0])
    e.valu(f"v_bfe_u32 v{t1}, v0, 4, 1", [t1], [0])
    e.valu(f"v_lshlrev_b32 v{t1}, 8, v{t1}", [t1], [t1])
    e.valu(f"v_lshrrev_b32 v{t2}, 5, v0", [t2], [0])
    e.valu(f"v_lshl_add_u32 v{t1}, v{t2}, 1, v{t1}", [t1], [t1, t2])
    e.raw(f"s_lshl_b32 s66, s{sHp}, 9\ns_lshl_b32 s70, s{sRw}, 7\ns_add_u32 s66, s66, s70")
    e.valu(f"v_add_u32 v{t1}, s66, v{t1}", [t1], [t1])
    for Ti in range(2):
        e.valu(f"v_add_u32 v{t2}, {16*Ti}, v{t0}", [t2], [t0])
        e.valu(f"v_and_b32 v{t2}, 31, v{t2}", [t2], [t2])
        e.valu(f"v_lshl_add_u32 v{so[Ti]}, v{t2}, 2, v{t1}", [so[Ti]], [t2, t1])
    e.raw(f"s_lshl_b32 s66, s{sHg}, 3\ns_add_u32 s66, s66, s{sW}\ns_lshl_b32 s66, s66, 12\ns_add_u32 s66, s66, s{sR0}\ns_lshl_b32 s66, s66, 1")
    e.valu(f"v_lshlrev_b32 v{sl}, 2, v0", [sl], [0])
    e.valu(f"v_add_u32 v{sg}, s66, v{sl}", [sg], [sl])
    e.raw(f"s_lshl_b32 s66, s{sW}, 8")
    e.valu(f"v_add_u32 v{sl}, s66, v{sl}", [sl], [sl])
    for r in range(32, 40): e.valu(f"v_mov_b32 v{r}, 0", [r], [])
    e.valu(f"v_and_b32 v{vBP}, 32, v0", [vBP], [0])
    e.valu(f"v_lshlrev_b32 v{vBP}, 2, v{vBP}", [vBP], [vBP])
    st(7)
    e.raw(f"s_waitcnt vmcnt({8+pre})")
    st(8)
    def unpack(dst, src):
        e.valu(f"v_lshlrev_b32 v{dst}, 16, v{src}", [dst], [src])
        e.valu(f"v_and_b32 v{dst+1}, s{sMask}, v{src}", [dst+1], [src])
        e.valu(f"v_lshlrev_b32 v{dst+2}, 16, v{src+1}", [dst+2], [src+1])
        e.valu(f"v_and_b32 v{dst+3}, s{sMask}, v{src+1}", [dst+3], [src+1])
    def rnd(x, tmp):
        if not emul: return
        e.valu(f"v_cvt_pk_bf16_f32 v{tmp}, v{x}, v{x+1}", [tmp], [])
        e.valu(f"v_cvt_pk_bf16_f32 v{tmp+1}, v{x+2}, v{x+3}", [tmp+1], [])
        unpack(x, tmp)
    A1 = 40; A2 = 44; B1 = 48; B2 = 52; QO = 56; QX = 60; X1 = 64; X2 = 68; Y1 = 72; Y2 = 76; sgn = 80; tp = 82
    unpack(A1, QB+4); unpack(B1, QB+6); unpack(A2, QB+8); unpack(B2, QB+10); unpack(QO, QB); unpack(QX, QB+2)
    e.valu(f"v_and_b32 v{sgn}, 16, v0", [sgn], [0])
    e.valu(f"v_lshlrev_b32 v{sgn}, 27, v{sgn}", [sgn], [sgn])
    for i in range(4): e.valu(f"v_xor_b32 v{B1+i}, v{sgn}, v{B1+i}", [B1+i], [B1+i, sgn])
    e.valu(f"v_xor_b32 v{sgn}, 0x80000000, v{sgn}", [sgn], [sgn])
    for i in range(4): e.valu(f"v_xor_b32 v{A2+i}, v{sgn}, v{A2+i}", [A2+i], [A2+i, sgn])
    for (d, x, y) in ((X1, QO, A1), (X2, QX, A2), (Y1, QX, B1), (Y2, QO, B2)):
        for p in (0, 2): e.valu(f"v_pk_mul_f32 {R(d+p)}, {R(x+p)}, {R(y+p)}", [d+p, d+p+1], [])
    for d in (X1, X2, Y1, Y2): rnd(d, tp)
    for (d, x) in ((X1, X2), (Y1, Y2)):
        for p in (0, 2): e.valu(f"v_pk_add_f32 {R(d+p)}, {R(d+p)}, {R(x+p)}", [d+p, d+p+1], [])
    rnd(X1, tp); rnd(Y1, tp)
    la = 84
    e.valu(f"v_and_b32 v{la}, 31, v0", [la], [0])
    e.valu(f"v_lshlrev_b32 v{la}, 4, v{la}", [la], [la])
    e.raw(f"s_lshl_b32 s66, s{sW}, 10\ns_lshl_b32 s70, s{sHp}, 11")
    e.valu(f"v_add_u32 v{la+1}, s66, v{la}", [la+1], [la])
    e.valu(f"v_add_u32 v{la}, s70, v{la}", [la], [la])
    e.raw(f"ds_write_b128 v{la+1}, {R(X1,4)} offset:{ABB}\nds_write_b128 v{la+1}, {R(Y1,4)} offset:{ABB+512}")
    kloads(8 - pre)
    e.raw("s_waitcnt vmcnt(8) lgkmcnt(0)\ns_barrier")
    for h in range(2):
        e.raw(f"ds_read_b128 {R(a_(h),4)}, v{la} offset:{ABB+1024*h}\nds_read_b128 {R(b_(h),4)}, v{la} offset:{ABB+1024*h+512}")
    e.raw(f"s_lshr_b32 s{sCoff}, s67, 1")
    def cs_read(buf):
        e.valu(f"v_add_u32 v{vCA}, s{sCoff}, v{vCa}", [vCA], [])
        e.valu(f"v_add_u32 v{vSA}, s{sCoff}, v{vSa}", [vSA], [])
        e.raw(f"ds_read_b64 {R(CSR[buf])}, v{vCA}\nds_read_b64 {R(CSR[buf]+2)}, v{vSA}")
        e.raw(f"s_add_u32 s{sCoff}, s{sCoff}, 512\ns_and_b32 s{sCoff}, s{sCoff}, 0x3fff")
    cs_read(0)
    st(1)
    e.raw(f"s_mov_b32 s{sIt}, 0")
    real_valu = e.valu
    e.raw(".p2align 6\nL_k:")
    e.raw(f"s_cmp_eq_u32 s{sIt}, 1\ns_cbranch_scc0 L_nolate")
    for k, p in enumerate((40, 42, 46, 48)):
        e.raw(f"global_load_dword v{TMP+12+k}, v{sg}, s[{p}:{p+1}] {scnt}")
    e.raw(f"s_cmp_eq_u32 s{sW}, 0\ns_cbranch_scc0 L_nolate")
    e.raw("s_memrealtime s[68:69]\ns_waitcnt lgkmcnt(0)")
    e.raw("s_mul_i32 s69, s69, 0x9e3779b9\ns_add_u32 s68, s68, s69\ns_or_b32 s68, s68, 1")
    e.raw(f"s_lshl_b32 s69, s{sHg}, 5")
    e.valu("v_mov_b32 v14, s68", [14], [])
    e.valu("v_mov_b32 v15, 0", [15], [])
    e.valu("v_mov_b32 v13, s69", [13], [])
    e.raw("s_mov_b64 exec, 1")
    e.raw("global_atomic_cmpswap v12, v13, v[14:15], s[60:61] sc0")
    e.raw("s_mov_b64 exec, -1")
    e.raw("L_nolate:")
    e.raw(f"s_cmp_eq_u32 s{sIt}, 2\ns_cbranch_scc0 L_nosw")
    for k in range(4): e.raw(f"ds_write_b32 v{sl}, v{TMP+12+k} offset:{SCB+2048*k}")
    e.raw("L_nosw:")
    for jj in range(8):
        s = jj % RS
        if jj == 4:
            e.raw(f"s_cmp_eq_u32 s{sIt}, {NIT-1}\ns_cselect_b32 s{sCur}, s{sV}, s{sK}\ns_cselect_b32 s{sCur+1}, s{sV+1}, s{sK+1}")
        e.raw("s_waitcnt lgkmcnt(0)")
        unpack(C, CSR[jj & 1]); unpack(S, CSR[jj & 1] + 2)
        cs_read((jj + 1) & 1)
        for k in range(2):
            for p in (0, 2):
                e.valu(f"v_pk_mul_f32 {R(W[k]+p)}, {R(a_(k)+p)}, {R(C+p)}", [W[k]+p, W[k]+p+1], [])
        for k in range(2):
            for p in (0, 2):
                e.valu(f"v_pk_fma_f32 {R(W[k]+p)}, {R(b_(k)+p)}, {R(S+p)}, {R(W[k]+p)}", [W[k]+p, W[k]+p+1], [])
        for k in range(2):
            e.valu(f"v_pk_add_f32 {R(SW[k])}, {R(W[k])}, {R(W[k]+2)}", [SW[k], SW[k]+1], [])
        for k in range(2):
            e.valu(f"v_add_f32 v{g_[k]}, v{SW[k]}, v{SW[k]+1}", [g_[k]], [])
        for k in range(2):
            x = kq(s, k)
            e.raw(f"s_waitcnt vmcnt(7)")
            for i in range(4): e.valu(f"v_cvt_f32_i32 v{x+i}, v{x+i}", [x+i], [x+i])
            e.valu(f"v_pk_mul_f32 {R(T[k])}, {R(x)}, {R(W[k])}", [T[k], T[k]+1], [])
            e.valu(f"v_pk_fma_f32 {R(T[k])}, {R(x+2)}, {R(W[k]+2)}, {R(T[k])}", [T[k], T[k]+1], [])
            issue_k(s, k)
            if k == 0:
                e.valu(f"v_permlane16_swap_b32 v{g_[0]}, v{g_[1]}", g_, g_, "perm")
            e.valu(f"v_add_f32 v{u_[k]}, v{T[k]}, v{T[k]+1}", [u_[k]], [])
        adv()
        if barq and (jj + 1) % barq == 0: e.raw("s_barrier")
        e.valu(f"v_add_f32 v{Ag[jj]}, v{g_[0]}, v{g_[1]}", [Ag[jj]], [])
        e.valu(f"v_permlane16_swap_b32 v{u_[0]}, v{u_[1]}", u_, u_, "perm")
        e.valu(f"v_add_f32 v{Au[jj]}, v{u_[0]}, v{u_[1]}", [Au[jj]], [])
        if jj & 1:
            for q in (Ag, Au):
                e.valu(f"v_add_f32_dpp v{q[jj-1]}, v{q[jj-1]}, v{q[jj-1]} row_ror:8 row_mask:0xf bank_mask:0x3", [q[jj-1]], [q[jj-1]], "dpp")
            for q in (Ag, Au):
                e.valu(f"v_add_f32_dpp v{q[jj-1]}, v{q[jj]}, v{q[jj]} row_ror:8 row_mask:0xf bank_mask:0xc", [q[jj-1]], [q[jj]], "dpp")
        if (jj & 3) == 3:
            for q in (Ag, Au):
                e.valu(f"v_add_f32_dpp v{q[jj-3]}, v{q[jj-3]}, v{q[jj-3]} row_half_mirror row_mask:0xf bank_mask:0x5", [q[jj-3]], [q[jj-3]], "dpp")
            for q in (Ag, Au):
                e.valu(f"v_add_f32_dpp v{q[jj-3]}, v{q[jj-1]}, v{q[jj-1]} row_half_mirror row_mask:0xf bank_mask:0xa", [q[jj-3]], [q[jj-1]], "dpp")
        if jj == 7:
            for n, (q, Rq) in enumerate(((Ag, Rg), (Au, Ru))):
                X = q[0]; Y = q[4]
                e.valu(f"v_cndmask_b32 v{Dt[2*n]}, v{Y}, v{X}, s[{sM1}:{sM1+1}]", [Dt[2*n]], [])
                e.valu(f"v_cndmask_b32 v{Dt[2*n+1]}, v{X}, v{Y}, s[{sM1}:{sM1+1}]", [Dt[2*n+1]], [])
                for i in (3, 2, 1): e.valu(f"v_mov_b32 v{Rq[i]}, v{Rq[i-1]}", [Rq[i]], [])
            for n, Rq in enumerate((Rg, Ru)):
                e.valu(f"v_add_f32_dpp v{Rq[0]}, v{Dt[2*n]}, v{Dt[2*n+1]} quad_perm:[2,3,0,1] row_mask:0xf bank_mask:0xf", [Rq[0]], [Dt[2*n]], "dpp")
    e.raw(f"s_add_u32 s{sIt}, s{sIt}, 1\ns_cmp_lt_u32 s{sIt}, {NIT}\ns_cbranch_scc1 L_k")
    st(2)
    e.raw("s_waitcnt lgkmcnt(0)")
    for Ti in range(2):
        for k, dst in enumerate((vks, vkz, vvs, vvz)):
            e.raw(f"ds_read_u16_d16_hi v{dst[Ti]}, v{so[Ti]} offset:{SCB+2048*k}")
    e.raw(f"s_cmp_eq_u32 s{sW}, 0\ns_cbranch_scc0 L_nopub")
    e.valu("v_cmp_eq_u32 vcc, 0, v12", [], [])
    e.raw("s_nop 1")
    e.valu("v_cndmask_b32 v12, v12, v14, vcc", [12], [])
    e.valu(f"v_mov_b32 v13, {NON}", [13], [])
    e.raw("s_mov_b64 exec, 1")
    e.raw("ds_write_b32 v13, v12")
    e.raw("s_mov_b64 exec, -1")
    e.raw("L_nopub:")
    Lu = [64, 65]; Lg = [66, 67]
    for (Rq, Lq, tt) in ((Rg, Lg, (68, 69, 70, 71)), (Ru, Lu, (72, 73, 74, 75))):
        for Ti in range(2):
            X = Rq[3-2*Ti]; Y = Rq[2-2*Ti]
            e.valu(f"v_cndmask_b32 v{tt[2*Ti]}, v{Y}, v{X}, s[{sM0}:{sM0+1}]", [tt[2*Ti]], [])
            e.valu(f"v_cndmask_b32 v{tt[2*Ti+1]}, v{X}, v{Y}, s[{sM0}:{sM0+1}]", [tt[2*Ti+1]], [])
    for (Rq, Lq, tt) in ((Rg, Lg, (68, 69, 70, 71)), (Ru, Lu, (72, 73, 74, 75))):
        for Ti in range(2):
            e.valu(f"v_add_f32_dpp v{Lq[Ti]}, v{tt[2*Ti]}, v{tt[2*Ti+1]} quad_perm:[1,0,3,2] row_mask:0xf bank_mask:0xf", [Lq[Ti]], [tt[2*Ti]], "dpp")
    e.raw("s_waitcnt lgkmcnt(0)")
    cbits = struct.unpack("<I", struct.pack("<f", math.log2(math.e) / math.sqrt(128.0)))[0]
    e.raw(f"s_mov_b32 s66, {cbits:#x}")
    for Ti in range(2):
        e.valu(f"v_fma_f32 v{Lu[Ti]}, -v{vkz[Ti]}, v{Lg[Ti]}, v{Lu[Ti]}", [Lu[Ti]], [])
        e.valu(f"v_mul_f32 v{vks[Ti]}, s66, v{vks[Ti]}", [vks[Ti]], [])
    for Ti in range(2):
        e.valu(f"v_mul_f32 v{Lu[Ti]}, v{Lu[Ti]}, v{vks[Ti]}", [Lu[Ti]], [])
    vm = 68; vl = 69; vcr = 70; tx = 71; P = [72, 73]
    def allred(r, op, tmp):
        e.valu(f"{op}_dpp v{r}, v{r}, v{r} quad_perm:[1,0,3,2] row_mask:0xf bank_mask:0xf", [r], [r], "dpp")
        e.valu(f"{op}_dpp v{r}, v{r}, v{r} quad_perm:[2,3,0,1] row_mask:0xf bank_mask:0xf", [r], [r], "dpp")
        e.valu(f"{op}_dpp v{r}, v{r}, v{r} row_half_mirror row_mask:0xf bank_mask:0xf", [r], [r], "dpp")
        e.valu(f"{op}_dpp v{r}, v{r}, v{r} row_mirror row_mask:0xf bank_mask:0xf", [r], [r], "dpp")
        e.valu(f"v_mov_b32 v{tmp}, v{r}", [tmp], [r])
        e.valu(f"v_permlane32_swap_b32 v{tmp}, v{r}", [tmp, r], [tmp, r], "perm")
        e.valu(f"{op} v{r}, v{r}, v{tmp}", [r], [r, tmp])
    e.valu(f"v_max_f32 v{vm}, v{Lu[0]}, v{Lu[1]}", [vm], [])
    allred(vm, "v_max_f32", tx)
    for Ti in range(2): e.valu(f"v_sub_f32 v{P[Ti]}, v{Lu[Ti]}, v{vm}", [P[Ti]], [])
    for Ti in range(2): e.valu(f"v_exp_f32 v{P[Ti]}, v{P[Ti]}", [P[Ti]], [P[Ti]], "trans")
    e.valu(f"v_add_f32 v{vl}, v{P[0]}, v{P[1]}", [vl], [P[0], P[1]])
    Q = [76, 77, 78, 79]
    e.valu(f"v_mul_f32 v{Q[0]}, v{P[0]}, v{vvs[0]}", [Q[0]], [P[0]])
    e.valu(f"v_mul_f32 v{Q[2]}, v{P[1]}, v{vvs[1]}", [Q[2]], [P[1]])
    e.valu(f"v_mul_f32 v{vcr}, v{Q[0]}, v{vvz[0]}", [vcr], [])
    e.valu(f"v_mov_b32 v{Q[1]}, v{Q[0]}", [Q[1]], [])
    e.valu(f"v_fmac_f32 v{vcr}, v{Q[2]}, v{vvz[1]}", [vcr], [])
    e.valu(f"v_mov_b32 v{Q[3]}, v{Q[2]}", [Q[3]], [])
    allred(vl, "v_add_f32", tx)
    allred(vcr, "v_add_f32", 74)
    def acc(h): return 16 + 4*h
    for r in range(16, 24): e.valu(f"v_mov_b32 v{r}, 0", [r], [])
    PB = 40
    def vbody(last):
        for jj in range(8):
            for h in range(2):
                src = h*16 + (jj & 1)*8 + ((jj >> 1) & 1)*4 + (jj >> 2)*2
                e.raw(f"ds_bpermute_b32 v{PB+2*jj+h}, v{vBP}, v{Q[0]} offset:{4*src}")
        e.valu(f"v_xor_b32 v{vBP}, 4, v{vBP}", [vBP], [])
        for jj in range(8):
            s = jj % RS
            do_issue = (not last) or jj < 4
            for h in range(2):
                x = kq(s, h); i_ = 2*jj + h
                wv = 7 if do_issue else 15 - i_
                e.raw(f"s_waitcnt vmcnt({wv}) lgkmcnt({15-i_})")
                for i in range(4): e.valu(f"v_cvt_f32_i32 v{x+i}, v{x+i}", [x+i], [x+i])
                pr = PB + i_; pe = pr & ~1
                sel = "op_sel_hi:[1,0,1]" if pr == pe else "op_sel:[0,1,0] op_sel_hi:[1,1,1]"
                for p in (0, 2):
                    e.valu(f"v_pk_fma_f32 {R(acc(h)+p)}, {R(x+p)}, {R(pe)}, {R(acc(h)+p)} {sel}", [acc(h)+p, acc(h)+p+1], [])
                if do_issue: issue_k(s, h, sV)
            if do_issue:
                adv()
                if barq and (jj + 1) % barq == 0: e.raw("s_barrier")
        if not last:
            for i in range(3): e.valu(f"v_mov_b32 v{Q[i]}, v{Q[i+1]}", [Q[i]], [])
    e.raw(f"s_mov_b32 s{sIt}, 0")
    e.raw(".p2align 6\nL_v:")
    vbody(False)
    e.raw(f"s_add_u32 s{sIt}, s{sIt}, 1\ns_cmp_lt_u32 s{sIt}, {NIT-1}\ns_cbranch_scc1 L_v")
    vbody(True)
    st(3)
    ad = 24; cc = 25; la = 26; hb = 27
    e.valu(f"v_lshrrev_b32 v{ad}, 5, v0", [ad], [])
    e.valu(f"v_lshlrev_b32 v{ad}, 6, v{ad}", [ad], [])
    e.raw(f"ds_bpermute_b32 v{cc}, v{ad}, v{vcr}")
    for i in range(4):
        x = acc(0) + i; y = acc(1) + i
        e.valu(f"v_permlane32_swap_b32 v{x}, v{y}", [x, y], [x, y], "perm")
    for i in range(4):
        x = acc(0) + i; y = acc(1) + i
        e.valu(f"v_add_f32 v{x}, v{x}, v{y}", [x], [])
    e.raw(f"s_lshl_b32 s66, s{sW}, 10")
    e.valu(f"v_lshlrev_b32 v{la}, 4, v0", [la], [])
    e.valu(f"v_add_u32 v{la}, s66, v{la}", [la], [])
    e.valu(f"v_and_b32 v{hb}, 16, v0", [hb], [])
    e.raw(f"s_lshl_b32 s66, s{sHp}, 5\ns_lshl_b32 s70, s{sRw}, 3\ns_add_u32 s66, s66, s70")
    e.valu(f"v_add_u32 v{hb}, s66, v{hb}", [hb], [])
    e.raw(f"ds_write_b64 v{hb}, v[{vm}:{vl}] offset:{MLB}")
    e.raw("s_waitcnt lgkmcnt(1)")
    for i in range(4):
        e.valu(f"v_sub_f32 v{acc(0)+i}, v{acc(0)+i}, v{cc}", [acc(0)+i], [])
    e.raw(f"ds_write_b128 v{la}, {R(acc(0),4)} offset:{SLB}")
    e.raw("s_waitcnt lgkmcnt(0)\ns_barrier")
    st(4)
    g = 24; dq = 25; aa = 26; ma = 27
    e.valu(f"v_lshrrev_b32 v{g}, 5, v0", [g], [])
    e.valu(f"v_and_b32 v{dq}, 31, v0", [dq], [])
    e.valu(f"v_lshlrev_b32 v{aa}, 4, v{dq}", [aa], [])
    e.raw(f"s_lshr_b32 s66, s{sW}, 1\ns_lshl_b32 s66, s66, 10\ns_and_b32 s70, s{sW}, 1\ns_lshl_b32 s70, s70, 9\ns_add_u32 s66, s66, s70")
    e.valu(f"v_lshl_add_u32 v{aa}, v{g}, 12, v{aa}", [aa], [])
    e.valu(f"v_add_u32 v{aa}, s66, v{aa}", [aa], [])
    e.raw(f"s_lshl_b32 s66, s{sW}, 4")
    e.valu(f"v_lshlrev_b32 v{ma}, 3, v{g}", [ma], [])
    e.valu(f"v_add_u32 v{ma}, s66, v{ma}", [ma], [])
    e.valu(f"v_mov_b32 v28, {NON}", [28], [])
    e.raw("ds_read_b32 v28, v28")
    e.raw(f"ds_read_b64 v[32:33], v{ma} offset:{MLB}")
    e.raw(f"ds_read_b128 v[8:11], v{aa} offset:{SLB}")
    e.raw("s_waitcnt lgkmcnt(1)")
    e.valu("v_not_b32 v29, v28", [29], [])
    e.valu("v_mov_b32 v14, v32", [14], [])
    e.valu("v_mov_b32 v12, v32", [12], [])
    e.valu("v_permlane32_swap_b32 v14, v12", [14, 12], [14, 12], "perm")
    e.valu("v_max_f32 v12, v12, v14", [12], [])
    e.valu("v_sub_f32 v32, v32, v12", [32], [])
    e.valu("v_exp_f32 v32, v32", [32], [32], "trans")
    e.valu("v_mul_f32 v13, v32, v33", [13], [32])
    e.raw("s_waitcnt lgkmcnt(0)")
    for c in range(4): e.valu(f"v_mul_f32 v{8+c}, v32, v{8+c}", [8+c], [32])
    for k, r in enumerate((8, 9, 10, 11, 13)): e.valu(f"v_mov_b32 v{16+k}, v{r}", [16+k], [])
    for k, r in enumerate((8, 9, 10, 11, 13)): e.valu(f"v_permlane32_swap_b32 v{16+k}, v{r}", [16+k, r], [16+k, r], "perm")
    for k, r in enumerate((8, 9, 10, 11, 13)): e.valu(f"v_add_f32 v{r}, v{r}, v{16+k}", [r], [])
    e.raw(f"s_lshl_b32 s66, s{sHg}, 3\ns_add_u32 s66, s66, s{sW}")
    e.raw(f"s_lshl_b32 s67, s{sXcd}, 2\ns_add_u32 s67, s67, s{sRg}")
    e.raw(f"s_lshl_b32 s72, s66, 5\ns_add_u32 s72, s72, s67")
    e.raw("s_mov_b32 s76, s62\ns_mov_b32 s77, s63\ns_mov_b32 s78, 0x300000\ns_mov_b32 s79, 0x20000")
    e.raw("s_lshl_b32 s73, s72, 10\ns_lshl_b32 s74, s72, 4\ns_add_u32 s74, s74, 0x200000")
    e.raw("s_mov_b32 s70, 0\ns_mov_b32 s71, -1")
    e.valu("v_cndmask_b32 v16, v8, v10, s[70:71]", [16], [])
    e.valu("v_mov_b32 v17, v28", [17], [])
    e.valu("v_cndmask_b32 v18, v9, v11, s[70:71]", [18], [])
    e.valu("v_mov_b32 v19, v29", [19], [])
    e.valu("v_mov_b32 v20, v12", [20], [])
    e.valu("v_mov_b32 v21, v28", [21], [])
    e.valu("v_mov_b32 v22, v13", [22], [])
    e.valu("v_mov_b32 v23, v29", [23], [])
    e.valu(f"v_lshlrev_b32 v{aa}, 5, v{dq}", [aa], [])
    e.valu(f"v_lshl_add_u32 v{aa}, v{g}, 4, v{aa}", [aa], [])
    e.valu(f"v_mov_b32 v{ma}, 0", [ma], [])
    e.raw(f"buffer_store_dwordx4 v[16:19], v{aa}, s[76:79], s73 offen sc1")
    e.raw("s_mov_b64 exec, 1")
    e.raw(f"buffer_store_dwordx4 v[20:23], v{ma}, s[76:79], s74 offen sc1")
    e.raw("s_mov_b64 exec, -1")
    st(5)
    e.raw(f"s_and_b32 s67, s{sHg}, 3\ns_cmp_eq_u32 s67, s{sRg}\ns_cbranch_scc0 L_dump")
    e.raw(f"s_lshl_b32 s66, s{sHg}, 3\ns_add_u32 s66, s66, s{sXcd}")
    e.raw(f"s_lshl_b32 s72, s66, 5\ns_lshl_b32 s67, s{sW}, 2\ns_add_u32 s72, s72, s67")
    e.raw("s_lshl_b32 s73, s72, 10\ns_lshl_b32 s74, s72, 4\ns_add_u32 s74, s74, 0x200000")
    e.valu(f"v_and_b32 v{ma}, 3, v0", [ma], [])
    e.valu(f"v_lshlrev_b32 v{ma}, 4, v{ma}", [ma], [])
    D0 = 32
    e.raw("s_mov_b32 s75, 0")
    e.raw("L_poll:")
    for i in range(4):
        e.raw(f"s_bitcmp1_b32 s75, {i}\ns_cbranch_scc1 L_sk{i}")
        e.raw(f"buffer_load_dwordx4 {R(D0+4*i,4)}, v{aa}, s[76:79], s73 offen offset:{1024*i} sc1")
        e.raw(f"L_sk{i}:")
    e.raw(f"buffer_load_dwordx4 v[48:51], v{ma}, s[76:79], s74 offen sc1")
    e.raw("s_waitcnt vmcnt(0)")
    for i in range(5):
        e.valu(f"v_cmp_ne_u32 vcc, v{D0+4*i+1}, v28", [], [])
        e.valu(f"v_cmp_ne_u32 s[70:71], v{D0+4*i+3}, v29", [], [])
        e.raw("s_or_b64 vcc, vcc, s[70:71]")
        e.raw(f"s_cmp_eq_u64 vcc, 0\ns_cselect_b32 s67, {1<<i}, 0\ns_or_b32 s75, s75, s67")
    e.raw("s_cmp_eq_u32 s75, 31\ns_cbranch_scc1 L_pdone")
    if sleep: e.raw(f"s_sleep {sleep}")
    e.raw("s_and_b32 s75, s75, 15\ns_branch L_poll")
    e.raw("L_pdone:")
    e.valu("v_max_f32_dpp v52, v48, v48 quad_perm:[1,0,3,2] row_mask:0xf bank_mask:0xf", [52], [48], "dpp")
    e.valu("v_max_f32_dpp v52, v52, v52 quad_perm:[2,3,0,1] row_mask:0xf bank_mask:0xf", [52], [52], "dpp")
    e.valu("v_sub_f32 v53, v48, v52", [53], [])
    e.valu("v_exp_f32 v53, v53", [53], [53], "trans")
    e.valu("v_mul_f32 v54, v53, v50", [54], [53])
    for i in range(4):
        e.valu(f"v_mov_b32_dpp v{56+i}, v53 quad_perm:[{i},{i},{i},{i}] row_mask:0xf bank_mask:0xf", [56+i], [53], "dpp")
    e.valu("v_add_f32_dpp v54, v54, v54 quad_perm:[1,0,3,2] row_mask:0xf bank_mask:0xf", [54], [54], "dpp")
    e.valu(f"v_mul_f32 v60, v56, v{D0}", [60], [])
    e.valu(f"v_mul_f32 v61, v56, v{D0+2}", [61], [])
    e.valu("v_add_f32_dpp v54, v54, v54 quad_perm:[2,3,0,1] row_mask:0xf bank_mask:0xf", [54], [54], "dpp")
    for i in range(1, 4):
        e.valu(f"v_fmac_f32 v60, v{56+i}, v{D0+4*i}", [60], [])
        e.valu(f"v_fmac_f32 v61, v{56+i}, v{D0+4*i+2}", [61], [])
    e.raw(f"s_lshl_b32 s67, s{sW}, 9")
    e.valu("v_lshlrev_b32 v62, 3, v0", [62], [])
    e.valu("v_add_u32 v63, s67, v62", [63], [])
    e.raw(f"s_lshl_b32 s67, s{sW}, 2")
    e.valu("v_mov_b32 v55, s67", [55], [])
    e.raw(f"ds_write_b64 v63, v[60:61] offset:{ABB}\nds_write_b32 v55, v52 offset:{ABB+4096}\nds_write_b32 v55, v54 offset:{ABB+4096+32}")
    e.raw("s_waitcnt lgkmcnt(0)\ns_barrier")
    e.raw(f"s_cmp_eq_u32 s{sW}, 0\ns_cbranch_scc0 L_dump")
    e.valu(f"v_mov_b32 v55, {ABB+4096}", [55], [])
    e.raw("ds_read_b128 v[32:35], v55\nds_read_b128 v[36:39], v55 offset:16\nds_read_b128 v[40:43], v55 offset:32\nds_read_b128 v[44:47], v55 offset:48")
    for i in range(8): e.raw(f"ds_read_b64 {R(64+2*i)}, v62 offset:{ABB+512*i}")
    e.raw("s_waitcnt lgkmcnt(8)")
    e.valu("v_max3_f32 v12, v32, v33, v34", [12], [])
    e.valu("v_max3_f32 v12, v12, v35, v36", [12], [])
    e.valu("v_max3_f32 v12, v12, v37, v38", [12], [])
    e.valu("v_max_f32 v12, v12, v39", [12], [])
    for i in range(8): e.valu(f"v_sub_f32 v{32+i}, v{32+i}, v12", [32+i], [])
    for i in range(8): e.valu(f"v_exp_f32 v{32+i}, v{32+i}", [32+i], [32+i], "trans")
    e.valu("v_mul_f32 v13, v32, v40", [13], [32])
    for i in range(1, 8): e.valu(f"v_fmac_f32 v13, v{32+i}, v{40+i}", [13], [32+i])
    e.valu("v_rcp_f32 v13, v13", [13], [13], "trans")
    e.raw("s_waitcnt lgkmcnt(0)")
    e.valu("v_mul_f32 v8, v32, v64", [8], [])
    e.valu("v_mul_f32 v9, v32, v65", [9], [])
    for i in range(1, 8):
        e.valu(f"v_fmac_f32 v8, v{32+i}, v{64+2*i}", [8], [])
        e.valu(f"v_fmac_f32 v9, v{32+i}, v{65+2*i}", [9], [])
    e.valu("v_mul_f32 v8, v8, v13", [8], [13])
    e.valu("v_mul_f32 v9, v9, v13", [9], [13])
    e.valu("v_cvt_pk_bf16_f32 v8, v8, v9", [8], [])
    e.raw("s_lshl_b32 s73, s66, 8")
    e.raw("s_mov_b32 s76, s58\ns_mov_b32 s77, s59\ns_mov_b32 s78, 0x4000\ns_mov_b32 s79, 0x20000")
    e.valu(f"v_lshrrev_b32 v{aa}, 2, v{aa}", [aa], [])
    e.raw(f"buffer_store_dword v8, v{aa}, s[76:79], s73 offen")
    if stamp: e.raw("s_waitcnt vmcnt(0)")
    st(6)
    e.raw("L_dump:")
    dump()
    e.raw("L_end:\ns_endpgm")
    e.raw(f""".section .rodata,"a"
.p2align 6
.amdhsa_kernel {KN}
.amdhsa_next_free_vgpr {NV}
.amdhsa_next_free_sgpr 102
.amdhsa_accum_offset {NV}
.amdhsa_group_segment_fixed_size 0
.amdhsa_kernarg_size 112
.amdhsa_user_sgpr_count 2
.amdhsa_user_sgpr_kernarg_segment_ptr 1
.amdhsa_system_sgpr_workgroup_id_x 1
.amdhsa_float_denorm_mode_32 3
.end_amdhsa_kernel""")
    return e.text()

if __name__ == "__main__":
    ap = argparse.ArgumentParser()
    ap.add_argument("--pol", default="nt"); ap.add_argument("-o"); ap.add_argument("--stamp", action="store_true")
    ap.add_argument("--rot", default="5,3,7"); ap.add_argument("--barq", type=int, default=4); ap.add_argument("--pre", type=int, default=8)
    ap.add_argument("--csnt", default="nt"); ap.add_argument("--sleep", type=int, default=0)
    a = ap.parse_args()
    open(a.o, "w").write(gen(pol=a.pol, stamp=a.stamp, rot=tuple(int(x) for x in a.rot.split(",")), barq=a.barq, pre=a.pre, csnt=a.csnt, sleep=a.sleep))
```

```python
import sys, argparse, re, math, struct
from gen import Em, R, KN

def gen(pol="nt", stamp=False, rot=(5, 3, 7), exp="", emul=True, sleep=0, scnt="nt", csnt="nt", barq=4, pre=8, order="qck", mlfirst=False, nopoll=False, RS=4, unpeel=False, hashm=0, diag=False, warm=False, xil=0, earlycas=False):
    e = Em()
    NW = 8; NIT = 4; NR = 2 * RS
    ABB = 0; SCB = 8192; SLB = 16384; MLB = 24576; NON = 24832; CSB = 25600
    LDS = CSB + 65536
    e.raw(f"; @launch grid=(256,1,1) block=({NW*64},1,1) lds={LDS}")
    e.raw('.amdgcn_target "amdgcn-amd-amdhsa--gfx950"\n.text')
    e.raw(f".globl {KN}\n.p2align 8\n.type {KN},@function\n{KN}:")
    vK = [1, 2]; vCa = 3; vSa = 4; vBP = 5; vCA = 6; vSA = 7
    def a_(h): return 16 + 8*h
    def b_(h): return 20 + 8*h
    vks = [32, 33]; vkz = [34, 35]; vvs = [36, 37]; vvz = [38, 39]
    C = 40; S = 44; W = [48, 56]; T = [52, 60]; SW = [54, 62]
    u_ = [64, 65]; g_ = [66, 67]
    Au = list(range(68, 76)); Ag = list(range(76, 84))
    Dt = [84, 85, 86, 87]
    Ru = [88, 89, 90, 91]; Rg = [92, 93, 94, 95]
    CSR = [96, 100]
    RING = 104
    def kq(s, h): return RING + 8*s + 4*h
    TMP = 104 + 8 * RS + 4
    NV = 256
    sK = 4; sV = 8; sCos = 12; sSin = 16; sCur = 20
    sKoff = 24; sCoff = 25; sIt = 26; sMask = 27; sM1 = 28; sM0 = 30
    sW = 3; sHg = 32; sRg = 33; sXcd = 34; sR0 = 35; sHp = 64; sRw = 65
    def st(k, force=False):
        if diag and k in (4, 5, 6) and not force: return
        if stamp: e.raw(f"s_memrealtime s[{80+2*k}:{81+2*k}]\ns_waitcnt lgkmcnt(0)")
    def dump():
        if not stamp: return
        e.raw("s_mov_b64 exec, 1")
        e.raw(f"s_lshl_b32 s99, s2, 3\ns_add_u32 s99, s99, s{sW}\ns_lshl_b32 s99, s99, 6\ns_add_u32 s99, s99, 0x400000")
        e.raw("s_mov_b32 s76, s62\ns_mov_b32 s77, s63\ns_mov_b32 s78, 0x800000\ns_mov_b32 s79, 0x20000")
        e.raw("v_mov_b32 v250, 0")
        e.raw("s_getreg_b32 s98, hwreg(HW_REG_XCC_ID)")
        for k in range(10):
            e.raw(f"v_mov_b32 v251, s{80+2*k}\nbuffer_store_dword v251, v250, s[76:79], s99 offen offset:{4*k}\ns_nop 1")
        e.raw("s_mov_b64 exec, -1")
    e.raw("s_cmp_ge_u32 s2, 256\ns_cbranch_scc1 L_end")
    e.raw("s_load_dwordx16 s[36:51], s[0:1], 0\ns_load_dwordx8 s[52:59], s[0:1], 64\ns_load_dwordx4 s[60:63], s[0:1], 96")
    if stamp:
        for k in range(9): e.raw(f"s_mov_b32 s{80+2*k}, 0")
        e.raw("s_memrealtime s[80:81]")
    e.valu("v_lshrrev_b32 v1, 6, v0", [1], [0])
    e.valu("v_and_b32 v0, 63, v0", [0], [0])
    e.valu(f"v_readfirstlane_b32 s{sW}, v1", [], [1], "rl")
    e.raw(f"s_and_b32 s{sXcd}, s2, 7\ns_lshr_b32 s66, s2, 3\ns_and_b32 s{sRg}, s66, 3\ns_lshr_b32 s{sHg}, s66, 2")
    e.raw(f"s_and_b32 s{sHp}, s{sW}, 3\ns_lshr_b32 s{sRw}, s{sW}, 2")
    ra, rb, rc = rot
    e.raw(f"s_mul_i32 s{sKoff}, s{sW}, {ra}\ns_mul_i32 s66, s{sRg}, {rb}\ns_add_u32 s{sKoff}, s{sKoff}, s66\ns_mul_i32 s66, s{sXcd}, {rc}\ns_add_u32 s{sKoff}, s{sKoff}, s66")
    if hashm:
        e.raw(f"s_lshl_b32 s{sKoff}, s2, 3\ns_add_u32 s{sKoff}, s{sKoff}, s{sW}\ns_mul_i32 s{sKoff}, s{sKoff}, {hashm}\ns_lshr_b32 s{sKoff}, s{sKoff}, 27")
    e.raw(f"s_and_b32 s{sKoff}, s{sKoff}, 31\ns_lshl_b32 s{sKoff}, s{sKoff}, 10")
    HS = 64
    if xil == 0:
        e.raw(f"s_lshl_b32 s{sR0}, s{sXcd}, 9\ns_lshl_b32 s66, s{sRg}, 7\ns_add_u32 s{sR0}, s{sR0}, s66")
    elif xil == 1:
        HS = 512
        e.raw(f"s_lshl_b32 s{sR0}, s{sXcd}, 6\ns_lshl_b32 s66, s{sRg}, 10\ns_add_u32 s{sR0}, s{sR0}, s66")
    elif xil == 2:
        e.raw(f"s_lshl_b32 s{sR0}, s{sXcd}, 7\ns_lshl_b32 s66, s{sRg}, 10\ns_add_u32 s{sR0}, s{sR0}, s66")
    elif xil == 3:
        HS = 2048
        e.raw(f"s_lshl_b32 s{sR0}, s{sXcd}, 6\ns_lshl_b32 s66, s{sRg}, 9\ns_add_u32 s{sR0}, s{sR0}, s66")
    HL = HS.bit_length() - 1
    e.raw(f"s_lshl_b32 s66, s{sRw}, {HL}\ns_add_u32 s66, s66, s{sR0}\ns_lshl_b32 s66, s66, 9\ns_lshl_b32 s67, s{sHg}, 24\ns_add_u32 s66, s66, s67\ns_lshl_b32 s67, s{sHp}, 22\ns_add_u32 s66, s66, s67")
    l16 = TMP + 4
    e.valu(f"v_lshlrev_b32 v{l16}, 4, v0", [l16], [0])
    e.valu(f"v_add_u32 v1, s66, v{l16}", [1], [l16])
    e.valu(f"v_add_u32 v2, {1<<21}, v1", [2], [1])
    qo = TMP; qx = TMP + 1; qh = TMP + 2; qhx = TMP + 3; csg = TMP + 5
    e.valu(f"v_lshlrev_b32 v{vCa}, 3, v0", [vCa], [0])
    e.valu(f"v_xor_b32 v{vSa}, 128, v{vCa}", [vSa], [vCa])
    e.valu(f"v_and_b32 v{qo}, 0xff, v{vCa}", [qo], [vCa])
    e.valu(f"v_and_b32 v{qx}, 0xff, v{vSa}", [qx], [vSa])
    e.raw(f"s_lshl_b32 s66, s{sHg}, 3\ns_add_u32 s66, s66, s{sW}\ns_lshl_b32 s66, s66, 8")
    e.valu(f"v_add_u32 v{qh}, s66, v{qo}", [qh], [qo])
    e.valu(f"v_add_u32 v{qhx}, s66, v{qx}", [qhx], [qx])
    e.raw(f"s_lshl_b32 s66, s{sHp}, 4\ns_add_u32 s66, s66, s{sR0}\ns_lshl_b32 s67, s{sRw}, {HL}\ns_add_u32 s66, s66, s67\ns_lshl_b32 s66, s66, 8")
    e.valu(f"v_add_u32 v{csg}, s66, v{l16}", [csg], [l16])
    e.raw(f"s_lshl_b32 s66, s{sRw}, 14\ns_add_u32 s66, s66, {CSB}\ns_add_u32 s67, s66, 32768")
    e.valu(f"v_add_u32 v{vCa}, s66, v{vCa}", [vCa], [vCa])
    e.valu(f"v_add_u32 v{vSa}, s67, v{vSa}", [vSa], [vSa])
    e.raw(f"s_mov_b32 s{sK+2}, 0x8000000\ns_mov_b32 s{sK+3}, 0x20000\ns_mov_b32 s{sCur+2}, 0x8000000\ns_mov_b32 s{sCur+3}, 0x20000")
    e.raw(f"s_mov_b32 s{sCos+2}, 0x100000\ns_mov_b32 s{sCos+3}, 0x20000\ns_mov_b32 s{sSin+2}, 0x100000\ns_mov_b32 s{sSin+3}, 0x20000")
    e.raw(f"s_mov_b32 s{sV+2}, 0x8000000\ns_mov_b32 s{sV+3}, 0x20000")
    e.raw(f"s_lshl_b32 s68, s{sW}, 12\ns_add_u32 s68, s68, {CSB}\ns_add_u32 s69, s68, 32768")
    e.raw("s_waitcnt lgkmcnt(0)")
    if warm:
        e.raw(f"s_lshl_b32 s70, s{sHg}, 3\ns_add_u32 s70, s70, s{sW}\ns_lshl_b32 s70, s70, 12\ns_add_u32 s70, s70, s{sR0}\ns_lshl_b32 s70, s70, 1")
        for k, p in enumerate((40, 42, 46, 48)): e.raw(f"s_load_dword s{72+k}, s[{p}:{p+1}], s70")
        e.raw("s_load_dword s76, s[62:63], 0\ns_mov_b32 s71, 0x200000\ns_load_dword s77, s[62:63], s71\ns_load_dword s78, s[58:59], 0\ns_load_dword s79, s[60:61], 0")
    e.raw(f"s_mov_b32 s{sCur}, s38\ns_mov_b32 s{sCur+1}, s39\ns_mov_b32 s{sCos}, s54\ns_mov_b32 s{sCos+1}, s55\ns_mov_b32 s{sSin}, s56\ns_mov_b32 s{sSin+1}, s57")
    def adv():
        e.raw(f"s_add_u32 s{sKoff}, s{sKoff}, 1024\ns_and_b32 s{sKoff}, s{sKoff}, 0x7fff")
    def issue_k(s, h, srd=sCur):
        e.raw(f"buffer_load_dwordx4 {R(kq(s,h),4)}, v{vK[h]}, s[{srd}:{srd+3}], s{sKoff} offen {pol}")
    QB = TMP + 12
    def qloads():
        e.raw(f"global_load_dwordx2 {R(QB)}, v{qh}, s[36:37]")
        e.raw(f"global_load_dwordx2 {R(QB+2)}, v{qhx}, s[36:37]")
        e.raw(f"global_load_dwordx2 {R(QB+4)}, v{qo}, s[50:51]")
        e.raw(f"global_load_dwordx2 {R(QB+6)}, v{qx}, s[50:51]")
        e.raw(f"global_load_dwordx2 {R(QB+8)}, v{qo}, s[52:53]")
        e.raw(f"global_load_dwordx2 {R(QB+10)}, v{qx}, s[52:53]")
    def csloads():
        e.raw("s_mov_b32 m0, s68\ns_nop 0")
        for i in range(4): e.raw(f"buffer_load_dwordx4 v{csg}, s[{sCos}:{sCos+3}], 0 offen offset:{1024*i} {csnt} lds")
        e.raw("s_mov_b32 m0, s69\ns_nop 0")
        for i in range(4): e.raw(f"buffer_load_dwordx4 v{csg}, s[{sSin}:{sSin+3}], 0 offen offset:{1024*i} {csnt} lds")
    kiss = [0]
    def kloads(n):
        for _ in range(n):
            i = kiss[0]; kiss[0] += 1
            issue_k(i // 2, i % 2)
            if i % 2: adv()
    e.raw(f"s_mov_b32 s67, s{sKoff}")
    qloads()
    csloads()
    kloads(pre)
    e.raw(f"s_mov_b32 s{sK}, s38\ns_mov_b32 s{sK+1}, s39\ns_mov_b32 s{sV}, s44\ns_mov_b32 s{sV+1}, s45")
    e.raw(f"s_mov_b32 s{sMask}, 0xffff0000")
    e.raw(f"s_mov_b32 s{sM1}, 0xcccccccc\ns_mov_b32 s{sM1+1}, 0xcccccccc\ns_mov_b32 s{sM0}, 0xaaaaaaaa\ns_mov_b32 s{sM0+1}, 0xaaaaaaaa")
    t0 = TMP + 6; t1 = TMP + 7; t2 = TMP + 8; so = [TMP + 24, TMP + 25]; sg = TMP + 26; sl = TMP + 27
    e.valu(f"v_bfrev_b32 v{t0}, v0", [t0], [0])
    e.valu(f"v_lshrrev_b32 v{t0}, 28, v{t0}", [t0], [t0])
    e.raw(f"s_lshr_b32 s66, s67, 10")
    e.valu(f"v_add_u32 v{t0}, s66, v{t0}", [t0], [t0])
    e.valu(f"v_bfe_u32 v{t1}, v0, 4, 1", [t1], [0])
    e.valu(f"v_lshlrev_b32 v{t1}, 8, v{t1}", [t1], [t1])
    e.valu(f"v_lshrrev_b32 v{t2}, 5, v0", [t2], [0])
    e.valu(f"v_lshl_add_u32 v{t1}, v{t2}, 1, v{t1}", [t1], [t1, t2])
    e.raw(f"s_lshl_b32 s66, s{sHp}, 9\ns_lshl_b32 s70, s{sRw}, 7\ns_add_u32 s66, s66, s70")
    e.valu(f"v_add_u32 v{t1}, s66, v{t1}", [t1], [t1])
    for Ti in range(2):
        e.valu(f"v_add_u32 v{t2}, {16*Ti}, v{t0}", [t2], [t0])
        e.valu(f"v_and_b32 v{t2}, 31, v{t2}", [t2], [t2])
        e.valu(f"v_lshl_add_u32 v{so[Ti]}, v{t2}, 2, v{t1}", [so[Ti]], [t2, t1])
    e.raw(f"s_lshl_b32 s66, s{sHg}, 3\ns_add_u32 s66, s66, s{sW}\ns_lshl_b32 s66, s66, 12\ns_add_u32 s66, s66, s{sR0}\ns_lshl_b32 s66, s66, 1")
    e.valu(f"v_lshlrev_b32 v{sl}, 2, v0", [sl], [0])
    e.valu(f"v_and_b32 v{sg}, 0x7c, v{sl}", [sg], [sl])
    e.valu(f"v_lshrrev_b32 v{t2}, 5, v0", [t2], [0])
    e.valu(f"v_lshl_add_u32 v{sg}, v{t2}, {HL+1}, v{sg}", [sg], [sg, t2])
    e.valu(f"v_add_u32 v{sg}, s66, v{sg}", [sg], [sg])
    e.raw(f"s_lshl_b32 s66, s{sW}, 8")
    e.valu(f"v_add_u32 v{sl}, s66, v{sl}", [sl], [sl])
    for r in range(32, 40): e.valu(f"v_mov_b32 v{r}, 0", [r], [])
    e.valu(f"v_and_b32 v{vBP}, 32, v0", [vBP], [0])
    e.valu(f"v_lshlrev_b32 v{vBP}, 2, v{vBP}", [vBP], [vBP])
    st(7)
    e.raw(f"s_waitcnt vmcnt({8+pre})")
    st(8)
    def unpack(dst, src):
        e.valu(f"v_lshlrev_b32 v{dst}, 16, v{src}", [dst], [src])
        e.valu(f"v_and_b32 v{dst+1}, s{sMask}, v{src}", [dst+1], [src])
        e.valu(f"v_lshlrev_b32 v{dst+2}, 16, v{src+1}", [dst+2], [src+1])
        e.valu(f"v_and_b32 v{dst+3}, s{sMask}, v{src+1}", [dst+3], [src+1])
    def rnd(x, tmp):
        if not emul: return
        e.valu(f"v_cvt_pk_bf16_f32 v{tmp}, v{x}, v{x+1}", [tmp], [])
        e.valu(f"v_cvt_pk_bf16_f32 v{tmp+1}, v{x+2}, v{x+3}", [tmp+1], [])
        unpack(x, tmp)
    A1 = 40; A2 = 44; B1 = 48; B2 = 52; QO = 56; QX = 60; X1 = 64; X2 = 68; Y1 = 72; Y2 = 76; sgn = 80; tp = 82
    unpack(A1, QB+4); unpack(B1, QB+6); unpack(A2, QB+8); unpack(B2, QB+10); unpack(QO, QB); unpack(QX, QB+2)
    e.valu(f"v_and_b32 v{sgn}, 16, v0", [sgn], [0])
    e.valu(f"v_lshlrev_b32 v{sgn}, 27, v{sgn}", [sgn], [sgn])
    for i in range(4): e.valu(f"v_xor_b32 v{B1+i}, v{sgn}, v{B1+i}", [B1+i], [B1+i, sgn])
    e.valu(f"v_xor_b32 v{sgn}, 0x80000000, v{sgn}", [sgn], [sgn])
    for i in range(4): e.valu(f"v_xor_b32 v{A2+i}, v{sgn}, v{A2+i}", [A2+i], [A2+i, sgn])
    for (d, x, y) in ((X1, QO, A1), (X2, QX, A2), (Y1, QX, B1), (Y2, QO, B2)):
        for p in (0, 2): e.valu(f"v_pk_mul_f32 {R(d+p)}, {R(x+p)}, {R(y+p)}", [d+p, d+p+1], [])
    for d in (X1, X2, Y1, Y2): rnd(d, tp)
    for (d, x) in ((X1, X2), (Y1, Y2)):
        for p in (0, 2): e.valu(f"v_pk_add_f32 {R(d+p)}, {R(d+p)}, {R(x+p)}", [d+p, d+p+1], [])
    rnd(X1, tp); rnd(Y1, tp)
    la = 84
    e.valu(f"v_and_b32 v{la}, 31, v0", [la], [0])
    e.valu(f"v_lshlrev_b32 v{la}, 4, v{la}", [la], [la])
    e.raw(f"s_lshl_b32 s66, s{sW}, 10\ns_lshl_b32 s70, s{sHp}, 11")
    e.valu(f"v_add_u32 v{la+1}, s66, v{la}", [la+1], [la])
    e.valu(f"v_add_u32 v{la}, s70, v{la}", [la], [la])
    e.raw(f"ds_write_b128 v{la+1}, {R(X1,4)} offset:{ABB}\nds_write_b128 v{la+1}, {R(Y1,4)} offset:{ABB+512}")
    def cas(lbl):
        e.raw(f"s_cmp_eq_u32 s{sW}, 0\ns_cbranch_scc0 {lbl}")
        e.raw("s_memrealtime s[68:69]\ns_waitcnt lgkmcnt(0)")
        e.raw("s_mul_i32 s69, s69, 0x9e3779b9\ns_add_u32 s68, s68, s69\ns_or_b32 s68, s68, 1")
        e.raw(f"s_lshl_b32 s69, s{sHg}, 5")
        e.valu("v_mov_b32 v14, s68", [14], [])
        e.valu("v_mov_b32 v15, 0", [15], [])
        e.valu("v_mov_b32 v13, s69", [13], [])
        e.raw("s_mov_b64 exec, 1")
        e.raw("global_atomic_cmpswap v12, v13, v[14:15], s[60:61] sc0")
        e.raw("s_mov_b64 exec, -1")
    kloads(NR - pre)
    if earlycas:
        cas('L_nocas0')
        e.raw("L_nocas0:")
    e.raw(f"s_waitcnt vmcnt({NR}) lgkmcnt(0)\ns_barrier")
    for h in range(2):
        e.raw(f"ds_read_b128 {R(a_(h),4)}, v{la} offset:{ABB+1024*h}\nds_read_b128 {R(b_(h),4)}, v{la} offset:{ABB+1024*h+512}")
    e.raw(f"s_lshr_b32 s{sCoff}, s67, 1")
    def cs_read(buf):
        e.valu(f"v_add_u32 v{vCA}, s{sCoff}, v{vCa}", [vCA], [])
        e.valu(f"v_add_u32 v{vSA}, s{sCoff}, v{vSa}", [vSA], [])
        e.raw(f"ds_read_b64 {R(CSR[buf])}, v{vCA}\nds_read_b64 {R(CSR[buf]+2)}, v{vSA}")
        e.raw(f"s_add_u32 s{sCoff}, s{sCoff}, 512\ns_and_b32 s{sCoff}, s{sCoff}, 0x3fff")
    cs_read(0)
    st(1)
    e.raw(f"s_mov_b32 s{sIt}, 0")
    real_valu = e.valu
    e.raw(".p2align 6\nL_k:")
    if diag:
        for k in (1, 2, 3):
            e.raw(f"s_cmp_eq_u32 s{sIt}, {k}\ns_cbranch_scc0 L_dg{k}")
            st(3 + k, True)
            e.raw(f"L_dg{k}:")
    e.raw(f"s_cmp_eq_u32 s{sIt}, 1\ns_cbranch_scc0 L_nolate")
    for k, p in enumerate((40, 42, 46, 48)):
        e.raw(f"global_load_dword v{TMP+12+k}, v{sg}, s[{p}:{p+1}] {scnt}")
    if not earlycas: cas('L_nolate')
    e.raw("L_nolate:")
    e.raw(f"s_cmp_eq_u32 s{sIt}, 2\ns_cbranch_scc0 L_nosw")
    for k in range(4): e.raw(f"ds_write_b32 v{sl}, v{TMP+12+k} offset:{SCB+2048*k}")
    e.raw("L_nosw:")
    for jj in range(8):
        s = jj % RS
        if jj == 8 - RS:
            e.raw(f"s_cmp_eq_u32 s{sIt}, {NIT-1}\ns_cselect_b32 s{sCur}, s{sV}, s{sK}\ns_cselect_b32 s{sCur+1}, s{sV+1}, s{sK+1}")
        e.raw("s_waitcnt lgkmcnt(0)")
        unpack(C, CSR[jj & 1]); unpack(S, CSR[jj & 1] + 2)
        cs_read((jj + 1) & 1)
        for k in range(2):
            for p in (0, 2):
                e.valu(f"v_pk_mul_f32 {R(W[k]+p)}, {R(a_(k)+p)}, {R(C+p)}", [W[k]+p, W[k]+p+1], [])
        for k in range(2):
            for p in (0, 2):
                e.valu(f"v_pk_fma_f32 {R(W[k]+p)}, {R(b_(k)+p)}, {R(S+p)}, {R(W[k]+p)}", [W[k]+p, W[k]+p+1], [])
        for k in range(2):
            e.valu(f"v_pk_add_f32 {R(SW[k])}, {R(W[k])}, {R(W[k]+2)}", [SW[k], SW[k]+1], [])
        for k in range(2):
            e.valu(f"v_add_f32 v{g_[k]}, v{SW[k]}, v{SW[k]+1}", [g_[k]], [])
        for k in range(2):
            x = kq(s, k)
            e.raw(f"s_waitcnt vmcnt({NR-1})")
            for i in range(4): e.valu(f"v_cvt_f32_i32 v{x+i}, v{x+i}", [x+i], [x+i])
            e.valu(f"v_pk_mul_f32 {R(T[k])}, {R(x)}, {R(W[k])}", [T[k], T[k]+1], [])
            e.valu(f"v_pk_fma_f32 {R(T[k])}, {R(x+2)}, {R(W[k]+2)}, {R(T[k])}", [T[k], T[k]+1], [])
            issue_k(s, k)
            if k == 0:
                e.valu(f"v_permlane16_swap_b32 v{g_[0]}, v{g_[1]}", g_, g_, "perm")
            e.valu(f"v_add_f32 v{u_[k]}, v{T[k]}, v{T[k]+1}", [u_[k]], [])
        adv()
        if barq and (jj + 1) % barq == 0: e.raw("s_barrier")
        e.valu(f"v_add_f32 v{Ag[jj]}, v{g_[0]}, v{g_[1]}", [Ag[jj]], [])
        e.valu(f"v_permlane16_swap_b32 v{u_[0]}, v{u_[1]}", u_, u_, "perm")
        e.valu(f"v_add_f32 v{Au[jj]}, v{u_[0]}, v{u_[1]}", [Au[jj]], [])
        if jj & 1:
            for q in (Ag, Au):
                e.valu(f"v_add_f32_dpp v{q[jj-1]}, v{q[jj-1]}, v{q[jj-1]} row_ror:8 row_mask:0xf bank_mask:0x3", [q[jj-1]], [q[jj-1]], "dpp")
            for q in (Ag, Au):
                e.valu(f"v_add_f32_dpp v{q[jj-1]}, v{q[jj]}, v{q[jj]} row_ror:8 row_mask:0xf bank_mask:0xc", [q[jj-1]], [q[jj]], "dpp")
        if (jj & 3) == 3:
            for q in (Ag, Au):
                e.valu(f"v_add_f32_dpp v{q[jj-3]}, v{q[jj-3]}, v{q[jj-3]} row_half_mirror row_mask:0xf bank_mask:0x5", [q[jj-3]], [q[jj-3]], "dpp")
            for q in (Ag, Au):
                e.valu(f"v_add_f32_dpp v{q[jj-3]}, v{q[jj-1]}, v{q[jj-1]} row_half_mirror row_mask:0xf bank_mask:0xa", [q[jj-3]], [q[jj-1]], "dpp")
        if jj == 7:
            for n, (q, Rq) in enumerate(((Ag, Rg), (Au, Ru))):
                X = q[0]; Y = q[4]
                e.valu(f"v_cndmask_b32 v{Dt[2*n]}, v{Y}, v{X}, s[{sM1}:{sM1+1}]", [Dt[2*n]], [])
                e.valu(f"v_cndmask_b32 v{Dt[2*n+1]}, v{X}, v{Y}, s[{sM1}:{sM1+1}]", [Dt[2*n+1]], [])
                for i in (3, 2, 1): e.valu(f"v_mov_b32 v{Rq[i]}, v{Rq[i-1]}", [Rq[i]], [])
            for n, Rq in enumerate((Rg, Ru)):
                e.valu(f"v_add_f32_dpp v{Rq[0]}, v{Dt[2*n]}, v{Dt[2*n+1]} quad_perm:[2,3,0,1] row_mask:0xf bank_mask:0xf", [Rq[0]], [Dt[2*n]], "dpp")
    e.raw(f"s_add_u32 s{sIt}, s{sIt}, 1\ns_cmp_lt_u32 s{sIt}, {NIT}\ns_cbranch_scc1 L_k")
    st(2)
    e.raw("s_waitcnt lgkmcnt(0)")
    for Ti in range(2):
        for k, dst in enumerate((vks, vkz, vvs, vvz)):
            e.raw(f"ds_read_u16_d16_hi v{dst[Ti]}, v{so[Ti]} offset:{SCB+2048*k}")
    e.raw(f"s_cmp_eq_u32 s{sW}, 0\ns_cbranch_scc0 L_nopub")
    e.valu("v_cmp_eq_u32 vcc, 0, v12", [], [])
    e.raw("s_nop 1")
    e.valu("v_cndmask_b32 v12, v12, v14, vcc", [12], [])
    e.valu(f"v_mov_b32 v13, {NON}", [13], [])
    e.raw("s_mov_b64 exec, 1")
    e.raw("ds_write_b32 v13, v12")
    e.raw("s_mov_b64 exec, -1")
    e.raw("L_nopub:")
    Lu = [64, 65]; Lg = [66, 67]
    for (Rq, Lq, tt) in ((Rg, Lg, (68, 69, 70, 71)), (Ru, Lu, (72, 73, 74, 75))):
        for Ti in range(2):
            X = Rq[3-2*Ti]; Y = Rq[2-2*Ti]
            e.valu(f"v_cndmask_b32 v{tt[2*Ti]}, v{Y}, v{X}, s[{sM0}:{sM0+1}]", [tt[2*Ti]], [])
            e.valu(f"v_cndmask_b32 v{tt[2*Ti+1]}, v{X}, v{Y}, s[{sM0}:{sM0+1}]", [tt[2*Ti+1]], [])
    for (Rq, Lq, tt) in ((Rg, Lg, (68, 69, 70, 71)), (Ru, Lu, (72, 73, 74, 75))):
        for Ti in range(2):
            e.valu(f"v_add_f32_dpp v{Lq[Ti]}, v{tt[2*Ti]}, v{tt[2*Ti+1]} quad_perm:[1,0,3,2] row_mask:0xf bank_mask:0xf", [Lq[Ti]], [tt[2*Ti]], "dpp")
    e.raw("s_waitcnt lgkmcnt(0)")
    cbits = struct.unpack("<I", struct.pack("<f", math.log2(math.e) / math.sqrt(128.0)))[0]
    e.raw(f"s_mov_b32 s66, {cbits:#x}")
    for Ti in range(2):
        e.valu(f"v_fma_f32 v{Lu[Ti]}, -v{vkz[Ti]}, v{Lg[Ti]}, v{Lu[Ti]}", [Lu[Ti]], [])
        e.valu(f"v_mul_f32 v{vks[Ti]}, s66, v{vks[Ti]}", [vks[Ti]], [])
    for Ti in range(2):
        e.valu(f"v_mul_f32 v{Lu[Ti]}, v{Lu[Ti]}, v{vks[Ti]}", [Lu[Ti]], [])
    vm = 68; vl = 69; vcr = 70; tx = 71; P = [72, 73]
    def allred(r, op, tmp):
        e.valu(f"{op}_dpp v{r}, v{r}, v{r} quad_perm:[1,0,3,2] row_mask:0xf bank_mask:0xf", [r], [r], "dpp")
        e.valu(f"{op}_dpp v{r}, v{r}, v{r} quad_perm:[2,3,0,1] row_mask:0xf bank_mask:0xf", [r], [r], "dpp")
        e.valu(f"{op}_dpp v{r}, v{r}, v{r} row_half_mirror row_mask:0xf bank_mask:0xf", [r], [r], "dpp")
        e.valu(f"{op}_dpp v{r}, v{r}, v{r} row_mirror row_mask:0xf bank_mask:0xf", [r], [r], "dpp")
        e.valu(f"v_mov_b32 v{tmp}, v{r}", [tmp], [r])
        e.valu(f"v_permlane32_swap_b32 v{tmp}, v{r}", [tmp, r], [tmp, r], "perm")
        e.valu(f"{op} v{r}, v{r}, v{tmp}", [r], [r, tmp])
    e.valu(f"v_max_f32 v{vm}, v{Lu[0]}, v{Lu[1]}", [vm], [])
    allred(vm, "v_max_f32", tx)
    for Ti in range(2): e.valu(f"v_sub_f32 v{P[Ti]}, v{Lu[Ti]}, v{vm}", [P[Ti]], [])
    for Ti in range(2): e.valu(f"v_exp_f32 v{P[Ti]}, v{P[Ti]}", [P[Ti]], [P[Ti]], "trans")
    e.valu(f"v_add_f32 v{vl}, v{P[0]}, v{P[1]}", [vl], [P[0], P[1]])
    Q = [76, 77, 78, 79]
    e.valu(f"v_mul_f32 v{Q[0]}, v{P[0]}, v{vvs[0]}", [Q[0]], [P[0]])
    e.valu(f"v_mul_f32 v{Q[2]}, v{P[1]}, v{vvs[1]}", [Q[2]], [P[1]])
    e.valu(f"v_mul_f32 v{vcr}, v{Q[0]}, v{vvz[0]}", [vcr], [])
    e.valu(f"v_mov_b32 v{Q[1]}, v{Q[0]}", [Q[1]], [])
    e.valu(f"v_fmac_f32 v{vcr}, v{Q[2]}, v{vvz[1]}", [vcr], [])
    e.valu(f"v_mov_b32 v{Q[3]}, v{Q[2]}", [Q[3]], [])
    allred(vl, "v_add_f32", tx)
    allred(vcr, "v_add_f32", 74)
    def acc(h): return 16 + 4*h
    for r in range(16, 24): e.valu(f"v_mov_b32 v{r}, 0", [r], [])
    PB = 40
    def vbody(last):
        for jj in range(8):
            for h in range(2):
                src = h*16 + (jj & 1)*8 + ((jj >> 1) & 1)*4 + (jj >> 2)*2
                e.raw(f"ds_bpermute_b32 v{PB+2*jj+h}, v{vBP}, v{Q[0]} offset:{4*src}")
        e.valu(f"v_xor_b32 v{vBP}, 4, v{vBP}", [vBP], [])
        for jj in range(8):
            s = jj % RS
            do_issue = (not last) or jj < 8 - RS
            if unpeel and jj == 8 - RS:
                e.raw(f"s_cmp_eq_u32 s{sIt}, {NIT-1}\ns_cselect_b32 s{sV+2}, 0, s{sV+2}")
            for h in range(2):
                x = kq(s, h); i_ = 2*jj + h
                wv = NR - 1 if do_issue else 15 - i_
                e.raw(f"s_waitcnt vmcnt({wv}) lgkmcnt({15-i_})")
                for i in range(4): e.valu(f"v_cvt_f32_i32 v{x+i}, v{x+i}", [x+i], [x+i])
                pr = PB + i_; pe = pr & ~1
                sel = "op_sel_hi:[1,0,1]" if pr == pe else "op_sel:[0,1,0] op_sel_hi:[1,1,1]"
                for p in (0, 2):
                    e.valu(f"v_pk_fma_f32 {R(acc(h)+p)}, {R(x+p)}, {R(pe)}, {R(acc(h)+p)} {sel}", [acc(h)+p, acc(h)+p+1], [])
                if do_issue: issue_k(s, h, sV)
            if do_issue:
                adv()
                if barq and (jj + 1) % barq == 0: e.raw("s_barrier")
        if not last:
            for i in range(3): e.valu(f"v_mov_b32 v{Q[i]}, v{Q[i+1]}", [Q[i]], [])
    e.raw(f"s_mov_b32 s{sIt}, 0")
    e.raw(".p2align 6\nL_v:")
    if not unpeel:
        vbody(False)
        e.raw(f"s_add_u32 s{sIt}, s{sIt}, 1\ns_cmp_lt_u32 s{sIt}, {NIT-1}\ns_cbranch_scc1 L_v")
        vbody(True)
    else:
        vbody(False)
        e.raw(f"s_add_u32 s{sIt}, s{sIt}, 1\ns_cmp_lt_u32 s{sIt}, {NIT}\ns_cbranch_scc1 L_v")
    st(3)
    ad = 24; cc = 25; la = 26; hb = 27
    e.valu(f"v_lshrrev_b32 v{ad}, 5, v0", [ad], [])
    e.valu(f"v_lshlrev_b32 v{ad}, 6, v{ad}", [ad], [])
    e.raw(f"ds_bpermute_b32 v{cc}, v{ad}, v{vcr}")
    for i in range(4):
        x = acc(0) + i; y = acc(1) + i
        e.valu(f"v_permlane32_swap_b32 v{x}, v{y}", [x, y], [x, y], "perm")
    for i in range(4):
        x = acc(0) + i; y = acc(1) + i
        e.valu(f"v_add_f32 v{x}, v{x}, v{y}", [x], [])
    e.raw(f"s_lshl_b32 s66, s{sW}, 10")
    e.valu(f"v_lshlrev_b32 v{la}, 4, v0", [la], [])
    e.valu(f"v_add_u32 v{la}, s66, v{la}", [la], [])
    e.valu(f"v_and_b32 v{hb}, 16, v0", [hb], [])
    e.raw(f"s_lshl_b32 s66, s{sHp}, 5\ns_lshl_b32 s70, s{sRw}, 3\ns_add_u32 s66, s66, s70")
    e.valu(f"v_add_u32 v{hb}, s66, v{hb}", [hb], [])
    e.raw(f"ds_write_b64 v{hb}, v[{vm}:{vl}] offset:{MLB}")
    e.raw("s_waitcnt lgkmcnt(1)")
    for i in range(4):
        e.valu(f"v_sub_f32 v{acc(0)+i}, v{acc(0)+i}, v{cc}", [acc(0)+i], [])
    e.raw(f"ds_write_b128 v{la}, {R(acc(0),4)} offset:{SLB}")
    e.raw("s_waitcnt lgkmcnt(0)\ns_barrier")
    st(4)
    g = 24; dq = 25; aa = 26; ma = 27
    e.valu(f"v_lshrrev_b32 v{g}, 5, v0", [g], [])
    e.valu(f"v_and_b32 v{dq}, 31, v0", [dq], [])
    e.valu(f"v_lshlrev_b32 v{aa}, 4, v{dq}", [aa], [])
    e.raw(f"s_lshr_b32 s66, s{sW}, 1\ns_lshl_b32 s66, s66, 10\ns_and_b32 s70, s{sW}, 1\ns_lshl_b32 s70, s70, 9\ns_add_u32 s66, s66, s70")
    e.valu(f"v_lshl_add_u32 v{aa}, v{g}, 12, v{aa}", [aa], [])
    e.valu(f"v_add_u32 v{aa}, s66, v{aa}", [aa], [])
    e.raw(f"s_lshl_b32 s66, s{sW}, 4")
    e.valu(f"v_lshlrev_b32 v{ma}, 3, v{g}", [ma], [])
    e.valu(f"v_add_u32 v{ma}, s66, v{ma}", [ma], [])
    e.valu(f"v_mov_b32 v28, {NON}", [28], [])
    e.raw("ds_read_b32 v28, v28")
    e.raw(f"ds_read_b64 v[32:33], v{ma} offset:{MLB}")
    e.raw(f"ds_read_b128 v[8:11], v{aa} offset:{SLB}")
    e.raw("s_waitcnt lgkmcnt(1)")
    e.valu("v_not_b32 v29, v28", [29], [])
    e.valu("v_mov_b32 v14, v32", [14], [])
    e.valu("v_mov_b32 v12, v32", [12], [])
    e.valu("v_permlane32_swap_b32 v14, v12", [14, 12], [14, 12], "perm")
    e.valu("v_max_f32 v12, v12, v14", [12], [])
    e.valu("v_sub_f32 v32, v32, v12", [32], [])
    e.valu("v_exp_f32 v32, v32", [32], [32], "trans")
    e.valu("v_mul_f32 v13, v32, v33", [13], [32])
    e.raw("s_waitcnt lgkmcnt(0)")
    for c in range(4): e.valu(f"v_mul_f32 v{8+c}, v32, v{8+c}", [8+c], [32])
    for k, r in enumerate((8, 9, 10, 11, 13)): e.valu(f"v_mov_b32 v{16+k}, v{r}", [16+k], [])
    for k, r in enumerate((8, 9, 10, 11, 13)): e.valu(f"v_permlane32_swap_b32 v{16+k}, v{r}", [16+k, r], [16+k, r], "perm")
    for k, r in enumerate((8, 9, 10, 11, 13)): e.valu(f"v_add_f32 v{r}, v{r}, v{16+k}", [r], [])
    e.raw(f"s_lshl_b32 s66, s{sHg}, 3\ns_add_u32 s66, s66, s{sW}")
    e.raw(f"s_lshl_b32 s67, s{sXcd}, 2\ns_add_u32 s67, s67, s{sRg}")
    e.raw(f"s_lshl_b32 s72, s66, 5\ns_add_u32 s72, s72, s67")
    e.raw("s_mov_b32 s76, s62\ns_mov_b32 s77, s63\ns_mov_b32 s78, 0x300000\ns_mov_b32 s79, 0x20000")
    e.raw("s_lshl_b32 s73, s72, 10\ns_lshl_b32 s74, s72, 4\ns_add_u32 s74, s74, 0x200000")
    e.raw("s_mov_b32 s70, 0\ns_mov_b32 s71, -1")
    e.valu("v_cndmask_b32 v16, v8, v10, s[70:71]", [16], [])
    e.valu("v_mov_b32 v17, v28", [17], [])
    e.valu("v_cndmask_b32 v18, v9, v11, s[70:71]", [18], [])
    e.valu("v_mov_b32 v19, v29", [19], [])
    e.valu("v_mov_b32 v20, v12", [20], [])
    e.valu("v_mov_b32 v21, v28", [21], [])
    e.valu("v_mov_b32 v22, v13", [22], [])
    e.valu("v_mov_b32 v23, v29", [23], [])
    e.valu(f"v_lshlrev_b32 v{aa}, 5, v{dq}", [aa], [])
    e.valu(f"v_lshl_add_u32 v{aa}, v{g}, 4, v{aa}", [aa], [])
    e.valu(f"v_mov_b32 v{ma}, 0", [ma], [])
    e.raw(f"buffer_store_dwordx4 v[16:19], v{aa}, s[76:79], s73 offen sc1")
    e.raw("s_mov_b64 exec, 1")
    e.raw(f"buffer_store_dwordx4 v[20:23], v{ma}, s[76:79], s74 offen sc1")
    e.raw("s_mov_b64 exec, -1")
    st(5)
    e.raw(f"s_and_b32 s67, s{sHg}, 3\ns_cmp_eq_u32 s67, s{sRg}\ns_cbranch_scc0 L_dump")
    e.raw(f"s_lshl_b32 s66, s{sHg}, 3\ns_add_u32 s66, s66, s{sXcd}")
    e.raw(f"s_lshl_b32 s72, s66, 5\ns_lshl_b32 s67, s{sW}, 2\ns_add_u32 s72, s72, s67")
    e.raw("s_lshl_b32 s73, s72, 10\ns_lshl_b32 s74, s72, 4\ns_add_u32 s74, s74, 0x200000")
    e.valu(f"v_and_b32 v{ma}, 3, v0", [ma], [])
    e.valu(f"v_lshlrev_b32 v{ma}, 4, v{ma}", [ma], [])
    D0 = 32
    e.raw("s_mov_b32 s75, 0")
    if mlfirst:
        e.raw("L_poll0:")
        e.raw(f"buffer_load_dwordx4 v[48:51], v{ma}, s[76:79], s74 offen sc1")
        e.raw("s_waitcnt vmcnt(0)")
        e.valu(f"v_cmp_ne_u32 vcc, v49, v28", [], [])
        e.valu(f"v_cmp_ne_u32 s[70:71], v51, v29", [], [])
        e.raw("s_or_b64 vcc, vcc, s[70:71]")
        e.raw("s_cmp_eq_u64 vcc, 0\ns_cbranch_scc1 L_poll")
        if sleep: e.raw(f"s_sleep {sleep}")
        e.raw("s_branch L_poll0")
    e.raw("L_poll:")
    for i in range(4):
        e.raw(f"s_bitcmp1_b32 s75, {i}\ns_cbranch_scc1 L_sk{i}")
        e.raw(f"buffer_load_dwordx4 {R(D0+4*i,4)}, v{aa}, s[76:79], s73 offen offset:{1024*i} sc1")
        e.raw(f"L_sk{i}:")
    e.raw(f"buffer_load_dwordx4 v[48:51], v{ma}, s[76:79], s74 offen sc1")
    e.raw("s_waitcnt vmcnt(0)")
    for i in range(5):
        e.valu(f"v_cmp_ne_u32 vcc, v{D0+4*i+1}, v28", [], [])
        e.valu(f"v_cmp_ne_u32 s[70:71], v{D0+4*i+3}, v29", [], [])
        e.raw("s_or_b64 vcc, vcc, s[70:71]")
        e.raw(f"s_cmp_eq_u64 vcc, 0\ns_cselect_b32 s67, {1<<i}, 0\ns_or_b32 s75, s75, s67")
    e.raw("s_cmp_eq_u32 s75, 31\ns_cbranch_scc1 L_pdone")
    if sleep: e.raw(f"s_sleep {sleep}")
    e.raw("s_and_b32 s75, s75, 15\ns_branch L_poll")
    e.raw("L_pdone:")
    e.valu("v_max_f32_dpp v52, v48, v48 quad_perm:[1,0,3,2] row_mask:0xf bank_mask:0xf", [52], [48], "dpp")
    e.valu("v_max_f32_dpp v52, v52, v52 quad_perm:[2,3,0,1] row_mask:0xf bank_mask:0xf", [52], [52], "dpp")
    e.valu("v_sub_f32 v53, v48, v52", [53], [])
    e.valu("v_exp_f32 v53, v53", [53], [53], "trans")
    e.valu("v_mul_f32 v54, v53, v50", [54], [53])
    for i in range(4):
        e.valu(f"v_mov_b32_dpp v{56+i}, v53 quad_perm:[{i},{i},{i},{i}] row_mask:0xf bank_mask:0xf", [56+i], [53], "dpp")
    e.valu("v_add_f32_dpp v54, v54, v54 quad_perm:[1,0,3,2] row_mask:0xf bank_mask:0xf", [54], [54], "dpp")
    e.valu(f"v_mul_f32 v60, v56, v{D0}", [60], [])
    e.valu(f"v_mul_f32 v61, v56, v{D0+2}", [61], [])
    e.valu("v_add_f32_dpp v54, v54, v54 quad_perm:[2,3,0,1] row_mask:0xf bank_mask:0xf", [54], [54], "dpp")
    for i in range(1, 4):
        e.valu(f"v_fmac_f32 v60, v{56+i}, v{D0+4*i}", [60], [])
        e.valu(f"v_fmac_f32 v61, v{56+i}, v{D0+4*i+2}", [61], [])
    e.raw(f"s_lshl_b32 s67, s{sW}, 9")
    e.valu("v_lshlrev_b32 v62, 3, v0", [62], [])
    e.valu("v_add_u32 v63, s67, v62", [63], [])
    e.raw(f"s_lshl_b32 s67, s{sW}, 2")
    e.valu("v_mov_b32 v55, s67", [55], [])
    e.raw(f"ds_write_b64 v63, v[60:61] offset:{ABB}\nds_write_b32 v55, v52 offset:{ABB+4096}\nds_write_b32 v55, v54 offset:{ABB+4096+32}")
    e.raw("s_waitcnt lgkmcnt(0)\ns_barrier")
    e.raw(f"s_cmp_eq_u32 s{sW}, 0\ns_cbranch_scc0 L_dump")
    e.valu(f"v_mov_b32 v55, {ABB+4096}", [55], [])
    e.raw("ds_read_b128 v[32:35], v55\nds_read_b128 v[36:39], v55 offset:16\nds_read_b128 v[40:43], v55 offset:32\nds_read_b128 v[44:47], v55 offset:48")
    for i in range(8): e.raw(f"ds_read_b64 {R(64+2*i)}, v62 offset:{ABB+512*i}")
    e.raw("s_waitcnt lgkmcnt(8)")
    e.valu("v_max3_f32 v12, v32, v33, v34", [12], [])
    e.valu("v_max3_f32 v12, v12, v35, v36", [12], [])
    e.valu("v_max3_f32 v12, v12, v37, v38", [12], [])
    e.valu("v_max_f32 v12, v12, v39", [12], [])
    for i in range(8): e.valu(f"v_sub_f32 v{32+i}, v{32+i}, v12", [32+i], [])
    for i in range(8): e.valu(f"v_exp_f32 v{32+i}, v{32+i}", [32+i], [32+i], "trans")
    e.valu("v_mul_f32 v13, v32, v40", [13], [32])
    for i in range(1, 8): e.valu(f"v_fmac_f32 v13, v{32+i}, v{40+i}", [13], [32+i])
    e.valu("v_rcp_f32 v13, v13", [13], [13], "trans")
    e.raw("s_waitcnt lgkmcnt(0)")
    e.valu("v_mul_f32 v8, v32, v64", [8], [])
    e.valu("v_mul_f32 v9, v32, v65", [9], [])
    for i in range(1, 8):
        e.valu(f"v_fmac_f32 v8, v{32+i}, v{64+2*i}", [8], [])
        e.valu(f"v_fmac_f32 v9, v{32+i}, v{65+2*i}", [9], [])
    e.valu("v_mul_f32 v8, v8, v13", [8], [13])
    e.valu("v_mul_f32 v9, v9, v13", [9], [13])
    e.valu("v_cvt_pk_bf16_f32 v8, v8, v9", [8], [])
    e.raw("s_lshl_b32 s73, s66, 8")
    e.raw("s_mov_b32 s76, s58\ns_mov_b32 s77, s59\ns_mov_b32 s78, 0x4000\ns_mov_b32 s79, 0x20000")
    e.valu(f"v_lshrrev_b32 v{aa}, 2, v{aa}", [aa], [])
    e.raw(f"buffer_store_dword v8, v{aa}, s[76:79], s73 offen")
    if stamp: e.raw("s_waitcnt vmcnt(0)")
    st(6)
    e.raw("L_dump:")
    dump()
    e.raw("L_end:\ns_endpgm")
    e.raw(f""".section .rodata,"a"
.p2align 6
.amdhsa_kernel {KN}
.amdhsa_next_free_vgpr {NV}
.amdhsa_next_free_sgpr 102
.amdhsa_accum_offset {NV}
.amdhsa_group_segment_fixed_size 0
.amdhsa_kernarg_size 112
.amdhsa_user_sgpr_count 2
.amdhsa_user_sgpr_kernarg_segment_ptr 1
.amdhsa_system_sgpr_workgroup_id_x 1
.amdhsa_float_denorm_mode_32 3
.end_amdhsa_kernel""")
    return e.text()

if __name__ == "__main__":
    ap = argparse.ArgumentParser()
    ap.add_argument("--pol", default="nt"); ap.add_argument("-o"); ap.add_argument("--stamp", action="store_true")
    ap.add_argument("--rot", default="5,3,7"); ap.add_argument("--barq", type=int, default=4); ap.add_argument("--pre", type=int, default=8)
    ap.add_argument("--csnt", default="nt"); ap.add_argument("--sleep", type=int, default=0); ap.add_argument("--mlfirst", action="store_true"); ap.add_argument("--RS", type=int, default=4); ap.add_argument("--unpeel", action="store_true"); ap.add_argument("--diag", action="store_true"); ap.add_argument("--earlycas", action="store_true"); ap.add_argument("--xil", type=int, default=0); ap.add_argument("--warm", action="store_true"); ap.add_argument("--hashm", type=lambda x: int(x, 0), default=0)
    a = ap.parse_args()
    open(a.o, "w").write(gen(pol=a.pol, stamp=a.stamp, rot=tuple(int(x) for x in a.rot.split(",")), barq=a.barq, pre=a.pre, csnt=a.csnt, sleep=a.sleep, mlfirst=a.mlfirst, RS=a.RS, unpeel=a.unpeel, hashm=a.hashm, diag=a.diag, warm=a.warm, xil=a.xil, earlycas=a.earlycas))
```

```python
import sys, argparse, re, math, struct
from gen import Em, R, KN

def gen(pol="nt", stamp=False, rot=(5, 3, 7), exp="", emul=True, sleep=0, scnt="nt", csnt="nt", barq=4, pre=8, order="qck", mlfirst=False, nopoll=False, RS=4, unpeel=False, hashm=0, diag=False, warm=False, xil=0, earlycas=False, clk=False, novalu=False, nolds=False, boost=False, earlysc=False):
    e = Em()
    NW = 8; NIT = 4; NR = 2 * RS
    ABB = 0; SCB = 8192; SLB = 16384; MLB = 24576; NON = 24832; CSB = 25600
    LDS = CSB + 65536
    e.raw(f"; @launch grid=(256,1,1) block=({NW*64},1,1) lds={LDS}")
    e.raw('.amdgcn_target "amdgcn-amd-amdhsa--gfx950"\n.text')
    e.raw(f".globl {KN}\n.p2align 8\n.type {KN},@function\n{KN}:")
    vK = [1, 2]; vCa = 3; vSa = 4; vBP = 5; vCA = 6; vSA = 7
    def a_(h): return 16 + 8*h
    def b_(h): return 20 + 8*h
    vks = [32, 33]; vkz = [34, 35]; vvs = [36, 37]; vvz = [38, 39]
    C = 40; S = 44; W = [48, 56]; T = [52, 60]; SW = [54, 62]
    u_ = [64, 65]; g_ = [66, 67]
    Au = list(range(68, 76)); Ag = list(range(76, 84))
    Dt = [84, 85, 86, 87]
    Ru = [88, 89, 90, 91]; Rg = [92, 93, 94, 95]
    CSR = [96, 100]
    RING = 104
    def kq(s, h): return RING + 8*s + 4*h
    TMP = 104 + 8 * (8 if boost else RS) + 4
    NPRE = 16 if boost else NR
    NV = 256
    sK = 4; sV = 8; sCos = 12; sSin = 16; sCur = 20
    sKoff = 24; sCoff = 25; sIt = 26; sMask = 27; sM1 = 28; sM0 = 30
    sW = 3; sHg = 32; sRg = 33; sXcd = 34; sR0 = 35; sHp = 64; sRw = 65
    def st(k, force=False):
        if (diag or clk) and k in (4, 5, 6) and not force: return
        if stamp: e.raw(f"s_memrealtime s[{80+2*k}:{81+2*k}]\ns_waitcnt lgkmcnt(0)")
    def dump():
        if not stamp: return
        e.raw("s_mov_b64 exec, 1")
        e.raw(f"s_lshl_b32 s99, s2, 3\ns_add_u32 s99, s99, s{sW}\ns_lshl_b32 s99, s99, 6\ns_add_u32 s99, s99, 0x400000")
        e.raw("s_mov_b32 s76, s62\ns_mov_b32 s77, s63\ns_mov_b32 s78, 0x800000\ns_mov_b32 s79, 0x20000")
        e.raw("v_mov_b32 v250, 0")
        e.raw("s_getreg_b32 s98, hwreg(HW_REG_XCC_ID)")
        for k in range(10):
            e.raw(f"v_mov_b32 v251, s{80+2*k}\nbuffer_store_dword v251, v250, s[76:79], s99 offen offset:{4*k}\ns_nop 1")
        e.raw("s_mov_b64 exec, -1")
    e.raw("s_cmp_ge_u32 s2, 256\ns_cbranch_scc1 L_end")
    e.raw("s_load_dwordx16 s[36:51], s[0:1], 0\ns_load_dwordx8 s[52:59], s[0:1], 64\ns_load_dwordx4 s[60:63], s[0:1], 96")
    if stamp:
        for k in range(9): e.raw(f"s_mov_b32 s{80+2*k}, 0")
        e.raw("s_memrealtime s[80:81]")
    e.valu("v_lshrrev_b32 v1, 6, v0", [1], [0])
    e.valu("v_and_b32 v0, 63, v0", [0], [0])
    e.valu(f"v_readfirstlane_b32 s{sW}, v1", [], [1], "rl")
    e.raw(f"s_and_b32 s{sXcd}, s2, 7\ns_lshr_b32 s66, s2, 3\ns_and_b32 s{sRg}, s66, 3\ns_lshr_b32 s{sHg}, s66, 2")
    e.raw(f"s_and_b32 s{sHp}, s{sW}, 3\ns_lshr_b32 s{sRw}, s{sW}, 2")
    ra, rb, rc = rot
    e.raw(f"s_mul_i32 s{sKoff}, s{sW}, {ra}\ns_mul_i32 s66, s{sRg}, {rb}\ns_add_u32 s{sKoff}, s{sKoff}, s66\ns_mul_i32 s66, s{sXcd}, {rc}\ns_add_u32 s{sKoff}, s{sKoff}, s66")
    if hashm:
        e.raw(f"s_lshl_b32 s{sKoff}, s2, 3\ns_add_u32 s{sKoff}, s{sKoff}, s{sW}\ns_mul_i32 s{sKoff}, s{sKoff}, {hashm}\ns_lshr_b32 s{sKoff}, s{sKoff}, 27")
    e.raw(f"s_and_b32 s{sKoff}, s{sKoff}, 31\ns_lshl_b32 s{sKoff}, s{sKoff}, 10")
    HS = 64
    if xil == 0:
        e.raw(f"s_lshl_b32 s{sR0}, s{sXcd}, 9\ns_lshl_b32 s66, s{sRg}, 7\ns_add_u32 s{sR0}, s{sR0}, s66")
    elif xil == 1:
        HS = 512
        e.raw(f"s_lshl_b32 s{sR0}, s{sXcd}, 6\ns_lshl_b32 s66, s{sRg}, 10\ns_add_u32 s{sR0}, s{sR0}, s66")
    elif xil == 2:
        e.raw(f"s_lshl_b32 s{sR0}, s{sXcd}, 7\ns_lshl_b32 s66, s{sRg}, 10\ns_add_u32 s{sR0}, s{sR0}, s66")
    elif xil == 3:
        HS = 2048
        e.raw(f"s_lshl_b32 s{sR0}, s{sXcd}, 6\ns_lshl_b32 s66, s{sRg}, 9\ns_add_u32 s{sR0}, s{sR0}, s66")
    elif isinstance(xil, str) or xil >= 100:
        pos = [int(c) for c in str(xil)[-6:]]
        HS = 64 << pos[5]
        e.raw(f"s_mov_b32 s{sR0}, 0")
        for (sr, b, p) in ((sXcd,0,pos[0]),(sXcd,1,pos[1]),(sXcd,2,pos[2]),(sRg,0,pos[3]),(sRg,1,pos[4])):
            e.raw(f"s_bfe_u32 s66, s{sr}, {hex((1<<16)|b)}\ns_lshl_b32 s66, s66, {6+p}\ns_or_b32 s{sR0}, s{sR0}, s66")
    HL = HS.bit_length() - 1
    e.raw(f"s_lshl_b32 s66, s{sRw}, {HL}\ns_add_u32 s66, s66, s{sR0}\ns_lshl_b32 s66, s66, 9\ns_lshl_b32 s67, s{sHg}, 24\ns_add_u32 s66, s66, s67\ns_lshl_b32 s67, s{sHp}, 22\ns_add_u32 s66, s66, s67")
    l16 = TMP + 4
    e.valu(f"v_lshlrev_b32 v{l16}, 4, v0", [l16], [0])
    e.valu(f"v_add_u32 v1, s66, v{l16}", [1], [l16])
    e.valu(f"v_add_u32 v2, {1<<21}, v1", [2], [1])
    qo = TMP; qx = TMP + 1; qh = TMP + 2; qhx = TMP + 3; csg = TMP + 5
    e.valu(f"v_lshlrev_b32 v{vCa}, 3, v0", [vCa], [0])
    e.valu(f"v_xor_b32 v{vSa}, 128, v{vCa}", [vSa], [vCa])
    e.valu(f"v_and_b32 v{qo}, 0xff, v{vCa}", [qo], [vCa])
    e.valu(f"v_and_b32 v{qx}, 0xff, v{vSa}", [qx], [vSa])
    e.raw(f"s_lshl_b32 s66, s{sHg}, 3\ns_add_u32 s66, s66, s{sW}\ns_lshl_b32 s66, s66, 8")
    e.valu(f"v_add_u32 v{qh}, s66, v{qo}", [qh], [qo])
    e.valu(f"v_add_u32 v{qhx}, s66, v{qx}", [qhx], [qx])
    e.raw(f"s_lshl_b32 s66, s{sHp}, 4\ns_add_u32 s66, s66, s{sR0}\ns_lshl_b32 s67, s{sRw}, {HL}\ns_add_u32 s66, s66, s67\ns_lshl_b32 s66, s66, 8")
    e.valu(f"v_add_u32 v{csg}, s66, v{l16}", [csg], [l16])
    e.raw(f"s_lshl_b32 s66, s{sRw}, 14\ns_add_u32 s66, s66, {CSB}\ns_add_u32 s67, s66, 32768")
    e.valu(f"v_add_u32 v{vCa}, s66, v{vCa}", [vCa], [vCa])
    e.valu(f"v_add_u32 v{vSa}, s67, v{vSa}", [vSa], [vSa])
    e.raw(f"s_mov_b32 s{sK+2}, 0x8000000\ns_mov_b32 s{sK+3}, 0x20000\ns_mov_b32 s{sCur+2}, 0x8000000\ns_mov_b32 s{sCur+3}, 0x20000")
    e.raw(f"s_mov_b32 s{sCos+2}, 0x100000\ns_mov_b32 s{sCos+3}, 0x20000\ns_mov_b32 s{sSin+2}, 0x100000\ns_mov_b32 s{sSin+3}, 0x20000")
    e.raw(f"s_mov_b32 s{sV+2}, 0x8000000\ns_mov_b32 s{sV+3}, 0x20000")
    e.raw(f"s_lshl_b32 s68, s{sW}, 12\ns_add_u32 s68, s68, {CSB}\ns_add_u32 s69, s68, 32768")
    e.raw("s_waitcnt lgkmcnt(0)")
    if warm:
        e.raw(f"s_lshl_b32 s70, s{sHg}, 3\ns_add_u32 s70, s70, s{sW}\ns_lshl_b32 s70, s70, 12\ns_add_u32 s70, s70, s{sR0}\ns_lshl_b32 s70, s70, 1")
        for k, p in enumerate((40, 42, 46, 48)): e.raw(f"s_load_dword s{72+k}, s[{p}:{p+1}], s70")
        e.raw("s_load_dword s76, s[62:63], 0\ns_mov_b32 s71, 0x200000\ns_load_dword s77, s[62:63], s71\ns_load_dword s78, s[58:59], 0\ns_load_dword s79, s[60:61], 0")
    e.raw(f"s_mov_b32 s{sCur}, s38\ns_mov_b32 s{sCur+1}, s39\ns_mov_b32 s{sCos}, s54\ns_mov_b32 s{sCos+1}, s55\ns_mov_b32 s{sSin}, s56\ns_mov_b32 s{sSin+1}, s57")
    def adv():
        e.raw(f"s_add_u32 s{sKoff}, s{sKoff}, 1024\ns_and_b32 s{sKoff}, s{sKoff}, 0x7fff")
    def issue_k(s, h, srd=sCur):
        e.raw(f"buffer_load_dwordx4 {R(kq(s,h),4)}, v{vK[h]}, s[{srd}:{srd+3}], s{sKoff} offen {pol}")
    QB = TMP + 12
    def qloads():
        e.raw(f"global_load_dwordx2 {R(QB)}, v{qh}, s[36:37]")
        e.raw(f"global_load_dwordx2 {R(QB+2)}, v{qhx}, s[36:37]")
        e.raw(f"global_load_dwordx2 {R(QB+4)}, v{qo}, s[50:51]")
        e.raw(f"global_load_dwordx2 {R(QB+6)}, v{qx}, s[50:51]")
        e.raw(f"global_load_dwordx2 {R(QB+8)}, v{qo}, s[52:53]")
        e.raw(f"global_load_dwordx2 {R(QB+10)}, v{qx}, s[52:53]")
    def csloads():
        e.raw("s_mov_b32 m0, s68\ns_nop 0")
        for i in range(4): e.raw(f"buffer_load_dwordx4 v{csg}, s[{sCos}:{sCos+3}], 0 offen offset:{1024*i} {csnt} lds")
        e.raw("s_mov_b32 m0, s69\ns_nop 0")
        for i in range(4): e.raw(f"buffer_load_dwordx4 v{csg}, s[{sSin}:{sSin+3}], 0 offen offset:{1024*i} {csnt} lds")
    kiss = [0]
    def kloads(n):
        for _ in range(n):
            i = kiss[0]; kiss[0] += 1
            issue_k(i // 2, i % 2)
            if i % 2: adv()
    e.raw(f"s_mov_b32 s67, s{sKoff}")
    qloads()
    csloads()
    kloads(pre)
    e.raw(f"s_mov_b32 s{sK}, s38\ns_mov_b32 s{sK+1}, s39\ns_mov_b32 s{sV}, s44\ns_mov_b32 s{sV+1}, s45")
    e.raw(f"s_mov_b32 s{sMask}, 0xffff0000")
    e.raw(f"s_mov_b32 s{sM1}, 0xcccccccc\ns_mov_b32 s{sM1+1}, 0xcccccccc\ns_mov_b32 s{sM0}, 0xaaaaaaaa\ns_mov_b32 s{sM0+1}, 0xaaaaaaaa")
    t0 = TMP + 6; t1 = TMP + 7; t2 = TMP + 8; so = [TMP + 24, TMP + 25]; sg = TMP + 26; sl = TMP + 27
    e.valu(f"v_bfrev_b32 v{t0}, v0", [t0], [0])
    e.valu(f"v_lshrrev_b32 v{t0}, 28, v{t0}", [t0], [t0])
    e.raw(f"s_lshr_b32 s66, s67, 10")
    e.valu(f"v_add_u32 v{t0}, s66, v{t0}", [t0], [t0])
    e.valu(f"v_bfe_u32 v{t1}, v0, 4, 1", [t1], [0])
    e.valu(f"v_lshlrev_b32 v{t1}, 8, v{t1}", [t1], [t1])
    e.valu(f"v_lshrrev_b32 v{t2}, 5, v0", [t2], [0])
    e.valu(f"v_lshl_add_u32 v{t1}, v{t2}, 1, v{t1}", [t1], [t1, t2])
    e.raw(f"s_lshl_b32 s66, s{sHp}, 9\ns_lshl_b32 s70, s{sRw}, 7\ns_add_u32 s66, s66, s70")
    e.valu(f"v_add_u32 v{t1}, s66, v{t1}", [t1], [t1])
    for Ti in range(2):
        e.valu(f"v_add_u32 v{t2}, {16*Ti}, v{t0}", [t2], [t0])
        e.valu(f"v_and_b32 v{t2}, 31, v{t2}", [t2], [t2])
        e.valu(f"v_lshl_add_u32 v{so[Ti]}, v{t2}, 2, v{t1}", [so[Ti]], [t2, t1])
    e.raw(f"s_lshl_b32 s66, s{sHg}, 3\ns_add_u32 s66, s66, s{sW}\ns_lshl_b32 s66, s66, 12\ns_add_u32 s66, s66, s{sR0}\ns_lshl_b32 s66, s66, 1")
    e.valu(f"v_lshlrev_b32 v{sl}, 2, v0", [sl], [0])
    e.valu(f"v_and_b32 v{sg}, 0x7c, v{sl}", [sg], [sl])
    e.valu(f"v_lshrrev_b32 v{t2}, 5, v0", [t2], [0])
    e.valu(f"v_lshl_add_u32 v{sg}, v{t2}, {HL+1}, v{sg}", [sg], [sg, t2])
    e.valu(f"v_add_u32 v{sg}, s66, v{sg}", [sg], [sg])
    e.raw(f"s_lshl_b32 s66, s{sW}, 8")
    e.valu(f"v_add_u32 v{sl}, s66, v{sl}", [sl], [sl])
    for r in range(32, 40): e.valu(f"v_mov_b32 v{r}, 0", [r], [])
    e.valu(f"v_and_b32 v{vBP}, 32, v0", [vBP], [0])
    e.valu(f"v_lshlrev_b32 v{vBP}, 2, v{vBP}", [vBP], [vBP])
    st(7)
    e.raw(f"s_waitcnt vmcnt({8+pre})")
    st(8)
    def unpack(dst, src):
        e.valu(f"v_lshlrev_b32 v{dst}, 16, v{src}", [dst], [src])
        e.valu(f"v_and_b32 v{dst+1}, s{sMask}, v{src}", [dst+1], [src])
        e.valu(f"v_lshlrev_b32 v{dst+2}, 16, v{src+1}", [dst+2], [src+1])
        e.valu(f"v_and_b32 v{dst+3}, s{sMask}, v{src+1}", [dst+3], [src+1])
    def rnd(x, tmp):
        if not emul: return
        e.valu(f"v_cvt_pk_bf16_f32 v{tmp}, v{x}, v{x+1}", [tmp], [])
        e.valu(f"v_cvt_pk_bf16_f32 v{tmp+1}, v{x+2}, v{x+3}", [tmp+1], [])
        unpack(x, tmp)
    A1 = 40; A2 = 44; B1 = 48; B2 = 52; QO = 56; QX = 60; X1 = 64; X2 = 68; Y1 = 72; Y2 = 76; sgn = 80; tp = 82
    unpack(A1, QB+4); unpack(B1, QB+6); unpack(A2, QB+8); unpack(B2, QB+10); unpack(QO, QB); unpack(QX, QB+2)
    e.valu(f"v_and_b32 v{sgn}, 16, v0", [sgn], [0])
    e.valu(f"v_lshlrev_b32 v{sgn}, 27, v{sgn}", [sgn], [sgn])
    for i in range(4): e.valu(f"v_xor_b32 v{B1+i}, v{sgn}, v{B1+i}", [B1+i], [B1+i, sgn])
    e.valu(f"v_xor_b32 v{sgn}, 0x80000000, v{sgn}", [sgn], [sgn])
    for i in range(4): e.valu(f"v_xor_b32 v{A2+i}, v{sgn}, v{A2+i}", [A2+i], [A2+i, sgn])
    for (d, x, y) in ((X1, QO, A1), (X2, QX, A2), (Y1, QX, B1), (Y2, QO, B2)):
        for p in (0, 2): e.valu(f"v_pk_mul_f32 {R(d+p)}, {R(x+p)}, {R(y+p)}", [d+p, d+p+1], [])
    for d in (X1, X2, Y1, Y2): rnd(d, tp)
    for (d, x) in ((X1, X2), (Y1, Y2)):
        for p in (0, 2): e.valu(f"v_pk_add_f32 {R(d+p)}, {R(d+p)}, {R(x+p)}", [d+p, d+p+1], [])
    rnd(X1, tp); rnd(Y1, tp)
    la = 84
    e.valu(f"v_and_b32 v{la}, 31, v0", [la], [0])
    e.valu(f"v_lshlrev_b32 v{la}, 4, v{la}", [la], [la])
    e.raw(f"s_lshl_b32 s66, s{sW}, 10\ns_lshl_b32 s70, s{sHp}, 11")
    e.valu(f"v_add_u32 v{la+1}, s66, v{la}", [la+1], [la])
    e.valu(f"v_add_u32 v{la}, s70, v{la}", [la], [la])
    e.raw(f"ds_write_b128 v{la+1}, {R(X1,4)} offset:{ABB}\nds_write_b128 v{la+1}, {R(Y1,4)} offset:{ABB+512}")
    def cas(lbl):
        e.raw(f"s_cmp_eq_u32 s{sW}, 0\ns_cbranch_scc0 {lbl}")
        e.raw("s_memrealtime s[68:69]\ns_waitcnt lgkmcnt(0)")
        e.raw("s_mul_i32 s69, s69, 0x9e3779b9\ns_add_u32 s68, s68, s69\ns_or_b32 s68, s68, 1")
        e.raw(f"s_lshl_b32 s69, s{sHg}, 5")
        e.valu("v_mov_b32 v14, s68", [14], [])
        e.valu("v_mov_b32 v15, 0", [15], [])
        e.valu("v_mov_b32 v13, s69", [13], [])
        e.raw("s_mov_b64 exec, 1")
        e.raw("global_atomic_cmpswap v12, v13, v[14:15], s[60:61] sc0")
        e.raw("s_mov_b64 exec, -1")
    kloads(NPRE - pre)
    if earlysc:
        for k, p in enumerate((40, 42, 46, 48)):
            e.raw(f"global_load_dword v{TMP+12+k}, v{sg}, s[{p}:{p+1}] {scnt}")
    if earlycas:
        cas('L_nocas0')
        e.raw("L_nocas0:")
    e.raw(f"s_waitcnt vmcnt({NPRE + (4 if earlysc else 0)}) lgkmcnt(0)\ns_barrier")
    for h in range(2):
        e.raw(f"ds_read_b128 {R(a_(h),4)}, v{la} offset:{ABB+1024*h}\nds_read_b128 {R(b_(h),4)}, v{la} offset:{ABB+1024*h+512}")
    e.raw(f"s_lshr_b32 s{sCoff}, s67, 1")
    def cs_read(buf):
        e.valu(f"v_add_u32 v{vCA}, s{sCoff}, v{vCa}", [vCA], [])
        e.valu(f"v_add_u32 v{vSA}, s{sCoff}, v{vSa}", [vSA], [])
        if not nolds: e.raw(f"ds_read_b64 {R(CSR[buf])}, v{vCA}\nds_read_b64 {R(CSR[buf]+2)}, v{vSA}")
        e.raw(f"s_add_u32 s{sCoff}, s{sCoff}, 512\ns_and_b32 s{sCoff}, s{sCoff}, 0x3fff")
    cs_read(0)
    st(1)
    if clk: e.raw("s_memtime s[88:89]\ns_waitcnt lgkmcnt(0)")
    e.raw(f"s_mov_b32 s{sIt}, 0")
    real_valu = e.valu
    def fake(text, dst, src_, kind=""):
        if text.startswith("v_cvt_f32_i32") and (dst[0] % 4 == 0): real_valu(text, dst, src_, kind)
        if text.startswith("v_add_u32") or text.startswith("v_mov_b32 v1"): real_valu(text, dst, src_, kind)
    if novalu: e.valu = fake
    e.raw(".p2align 6\nL_k:")
    if diag:
        for k in (1, 2, 3):
            e.raw(f"s_cmp_eq_u32 s{sIt}, {k}\ns_cbranch_scc0 L_dg{k}")
            st(3 + k, True)
            e.raw(f"L_dg{k}:")
    e.raw(f"s_cmp_eq_u32 s{sIt}, 1\ns_cbranch_scc0 L_nolate")
    for k, p in enumerate((40, 42, 46, 48)):
        if not earlysc: e.raw(f"global_load_dword v{TMP+12+k}, v{sg}, s[{p}:{p+1}] {scnt}")
        else: e.raw(f"ds_write_b32 v{sl}, v{TMP+12+k} offset:{SCB+2048*k}")
    if not earlycas: cas('L_nolate')
    e.raw("L_nolate:")
    e.raw(f"s_cmp_eq_u32 s{sIt}, 2\ns_cbranch_scc0 L_nosw")
    for k in range(4):
        if not earlysc: e.raw(f"ds_write_b32 v{sl}, v{TMP+12+k} offset:{SCB+2048*k}")
    e.raw("L_nosw:")
    for jj in range(8):
        s = jj % RS
        so_ = s
        if boost: s = jj; so_ = (jj + 4) % 8
        if jj == 8 - RS:
            e.raw(f"s_cmp_eq_u32 s{sIt}, {NIT-1}\ns_cselect_b32 s{sCur}, s{sV}, s{sK}\ns_cselect_b32 s{sCur+1}, s{sV+1}, s{sK+1}")
        e.raw("s_waitcnt lgkmcnt(0)")
        unpack(C, CSR[jj & 1]); unpack(S, CSR[jj & 1] + 2)
        cs_read((jj + 1) & 1)
        for k in range(2):
            for p in (0, 2):
                e.valu(f"v_pk_mul_f32 {R(W[k]+p)}, {R(a_(k)+p)}, {R(C+p)}", [W[k]+p, W[k]+p+1], [])
        for k in range(2):
            for p in (0, 2):
                e.valu(f"v_pk_fma_f32 {R(W[k]+p)}, {R(b_(k)+p)}, {R(S+p)}, {R(W[k]+p)}", [W[k]+p, W[k]+p+1], [])
        for k in range(2):
            e.valu(f"v_pk_add_f32 {R(SW[k])}, {R(W[k])}, {R(W[k]+2)}", [SW[k], SW[k]+1], [])
        for k in range(2):
            e.valu(f"v_add_f32 v{g_[k]}, v{SW[k]}, v{SW[k]+1}", [g_[k]], [])
        for k in range(2):
            x = kq(s, k)
            if boost and jj < 4:
                e.raw(f"s_waitcnt vmcnt({15-2*jj-k})\ns_cmp_eq_u32 s{sIt}, 0\ns_cbranch_scc1 L_bw{jj}_{k}\ns_waitcnt vmcnt(7)")
                issue_k(so_, k)
                if k == 1: adv()
                e.raw(f"L_bw{jj}_{k}:")
            else:
                e.raw(f"s_waitcnt vmcnt({NR-1})")
                if boost: issue_k(so_, k)
            for i in range(4): e.valu(f"v_cvt_f32_i32 v{x+i}, v{x+i}", [x+i], [x+i])
            e.valu(f"v_pk_mul_f32 {R(T[k])}, {R(x)}, {R(W[k])}", [T[k], T[k]+1], [])
            e.valu(f"v_pk_fma_f32 {R(T[k])}, {R(x+2)}, {R(W[k]+2)}, {R(T[k])}", [T[k], T[k]+1], [])
            if not boost: issue_k(s, k)
            if k == 0:
                e.valu(f"v_permlane16_swap_b32 v{g_[0]}, v{g_[1]}", g_, g_, "perm")
            e.valu(f"v_add_f32 v{u_[k]}, v{T[k]}, v{T[k]+1}", [u_[k]], [])
        if not (boost and jj < 4): adv()
        if barq and (jj + 1) % barq == 0: e.raw("s_barrier")
        e.valu(f"v_add_f32 v{Ag[jj]}, v{g_[0]}, v{g_[1]}", [Ag[jj]], [])
        e.valu(f"v_permlane16_swap_b32 v{u_[0]}, v{u_[1]}", u_, u_, "perm")
        e.valu(f"v_add_f32 v{Au[jj]}, v{u_[0]}, v{u_[1]}", [Au[jj]], [])
        if jj & 1:
            for q in (Ag, Au):
                e.valu(f"v_add_f32_dpp v{q[jj-1]}, v{q[jj-1]}, v{q[jj-1]} row_ror:8 row_mask:0xf bank_mask:0x3", [q[jj-1]], [q[jj-1]], "dpp")
            for q in (Ag, Au):
                e.valu(f"v_add_f32_dpp v{q[jj-1]}, v{q[jj]}, v{q[jj]} row_ror:8 row_mask:0xf bank_mask:0xc", [q[jj-1]], [q[jj]], "dpp")
        if (jj & 3) == 3:
            for q in (Ag, Au):
                e.valu(f"v_add_f32_dpp v{q[jj-3]}, v{q[jj-3]}, v{q[jj-3]} row_half_mirror row_mask:0xf bank_mask:0x5", [q[jj-3]], [q[jj-3]], "dpp")
            for q in (Ag, Au):
                e.valu(f"v_add_f32_dpp v{q[jj-3]}, v{q[jj-1]}, v{q[jj-1]} row_half_mirror row_mask:0xf bank_mask:0xa", [q[jj-3]], [q[jj-1]], "dpp")
        if jj == 7:
            for n, (q, Rq) in enumerate(((Ag, Rg), (Au, Ru))):
                X = q[0]; Y = q[4]
                e.valu(f"v_cndmask_b32 v{Dt[2*n]}, v{Y}, v{X}, s[{sM1}:{sM1+1}]", [Dt[2*n]], [])
                e.valu(f"v_cndmask_b32 v{Dt[2*n+1]}, v{X}, v{Y}, s[{sM1}:{sM1+1}]", [Dt[2*n+1]], [])
                for i in (3, 2, 1): e.valu(f"v_mov_b32 v{Rq[i]}, v{Rq[i-1]}", [Rq[i]], [])
            for n, Rq in enumerate((Rg, Ru)):
                e.valu(f"v_add_f32_dpp v{Rq[0]}, v{Dt[2*n]}, v{Dt[2*n+1]} quad_perm:[2,3,0,1] row_mask:0xf bank_mask:0xf", [Rq[0]], [Dt[2*n]], "dpp")
    e.raw(f"s_add_u32 s{sIt}, s{sIt}, 1\ns_cmp_lt_u32 s{sIt}, {NIT}\ns_cbranch_scc1 L_k")
    e.valu = real_valu
    st(2)
    if clk: e.raw("s_memtime s[90:91]\ns_waitcnt lgkmcnt(0)")
    e.raw("s_waitcnt lgkmcnt(0)")
    for Ti in range(2):
        for k, dst in enumerate((vks, vkz, vvs, vvz)):
            e.raw(f"ds_read_u16_d16_hi v{dst[Ti]}, v{so[Ti]} offset:{SCB+2048*k}")
    e.raw(f"s_cmp_eq_u32 s{sW}, 0\ns_cbranch_scc0 L_nopub")
    e.valu("v_cmp_eq_u32 vcc, 0, v12", [], [])
    e.raw("s_nop 1")
    e.valu("v_cndmask_b32 v12, v12, v14, vcc", [12], [])
    e.valu(f"v_mov_b32 v13, {NON}", [13], [])
    e.raw("s_mov_b64 exec, 1")
    e.raw("ds_write_b32 v13, v12")
    e.raw("s_mov_b64 exec, -1")
    e.raw("L_nopub:")
    Lu = [64, 65]; Lg = [66, 67]
    for (Rq, Lq, tt) in ((Rg, Lg, (68, 69, 70, 71)), (Ru, Lu, (72, 73, 74, 75))):
        for Ti in range(2):
            X = Rq[3-2*Ti]; Y = Rq[2-2*Ti]
            e.valu(f"v_cndmask_b32 v{tt[2*Ti]}, v{Y}, v{X}, s[{sM0}:{sM0+1}]", [tt[2*Ti]], [])
            e.valu(f"v_cndmask_b32 v{tt[2*Ti+1]}, v{X}, v{Y}, s[{sM0}:{sM0+1}]", [tt[2*Ti+1]], [])
    for (Rq, Lq, tt) in ((Rg, Lg, (68, 69, 70, 71)), (Ru, Lu, (72, 73, 74, 75))):
        for Ti in range(2):
            e.valu(f"v_add_f32_dpp v{Lq[Ti]}, v{tt[2*Ti]}, v{tt[2*Ti+1]} quad_perm:[1,0,3,2] row_mask:0xf bank_mask:0xf", [Lq[Ti]], [tt[2*Ti]], "dpp")
    e.raw("s_waitcnt lgkmcnt(0)")
    cbits = struct.unpack("<I", struct.pack("<f", math.log2(math.e) / math.sqrt(128.0)))[0]
    e.raw(f"s_mov_b32 s66, {cbits:#x}")
    for Ti in range(2):
        e.valu(f"v_fma_f32 v{Lu[Ti]}, -v{vkz[Ti]}, v{Lg[Ti]}, v{Lu[Ti]}", [Lu[Ti]], [])
        e.valu(f"v_mul_f32 v{vks[Ti]}, s66, v{vks[Ti]}", [vks[Ti]], [])
    for Ti in range(2):
        e.valu(f"v_mul_f32 v{Lu[Ti]}, v{Lu[Ti]}, v{vks[Ti]}", [Lu[Ti]], [])
    vm = 68; vl = 69; vcr = 70; tx = 71; P = [72, 73]
    def allred(r, op, tmp):
        e.valu(f"{op}_dpp v{r}, v{r}, v{r} quad_perm:[1,0,3,2] row_mask:0xf bank_mask:0xf", [r], [r], "dpp")
        e.valu(f"{op}_dpp v{r}, v{r}, v{r} quad_perm:[2,3,0,1] row_mask:0xf bank_mask:0xf", [r], [r], "dpp")
        e.valu(f"{op}_dpp v{r}, v{r}, v{r} row_half_mirror row_mask:0xf bank_mask:0xf", [r], [r], "dpp")
        e.valu(f"{op}_dpp v{r}, v{r}, v{r} row_mirror row_mask:0xf bank_mask:0xf", [r], [r], "dpp")
        e.valu(f"v_mov_b32 v{tmp}, v{r}", [tmp], [r])
        e.valu(f"v_permlane32_swap_b32 v{tmp}, v{r}", [tmp, r], [tmp, r], "perm")
        e.valu(f"{op} v{r}, v{r}, v{tmp}", [r], [r, tmp])
    e.valu(f"v_max_f32 v{vm}, v{Lu[0]}, v{Lu[1]}", [vm], [])
    allred(vm, "v_max_f32", tx)
    for Ti in range(2): e.valu(f"v_sub_f32 v{P[Ti]}, v{Lu[Ti]}, v{vm}", [P[Ti]], [])
    for Ti in range(2): e.valu(f"v_exp_f32 v{P[Ti]}, v{P[Ti]}", [P[Ti]], [P[Ti]], "trans")
    e.valu(f"v_add_f32 v{vl}, v{P[0]}, v{P[1]}", [vl], [P[0], P[1]])
    Q = [76, 77, 78, 79]
    e.valu(f"v_mul_f32 v{Q[0]}, v{P[0]}, v{vvs[0]}", [Q[0]], [P[0]])
    e.valu(f"v_mul_f32 v{Q[2]}, v{P[1]}, v{vvs[1]}", [Q[2]], [P[1]])
    e.valu(f"v_mul_f32 v{vcr}, v{Q[0]}, v{vvz[0]}", [vcr], [])
    e.valu(f"v_mov_b32 v{Q[1]}, v{Q[0]}", [Q[1]], [])
    e.valu(f"v_fmac_f32 v{vcr}, v{Q[2]}, v{vvz[1]}", [vcr], [])
    e.valu(f"v_mov_b32 v{Q[3]}, v{Q[2]}", [Q[3]], [])
    allred(vl, "v_add_f32", tx)
    allred(vcr, "v_add_f32", 74)
    def acc(h): return 16 + 4*h
    for r in range(16, 24): e.valu(f"v_mov_b32 v{r}, 0", [r], [])
    PB = 40
    def vbody(last):
        for jj in range(8):
            for h in range(2):
                src = h*16 + (jj & 1)*8 + ((jj >> 1) & 1)*4 + (jj >> 2)*2
                e.raw(f"ds_bpermute_b32 v{PB+2*jj+h}, v{vBP}, v{Q[0]} offset:{4*src}")
        e.valu(f"v_xor_b32 v{vBP}, 4, v{vBP}", [vBP], [])
        for jj in range(8):
            s = jj % RS
            so_ = s
            if boost: s = jj; so_ = (jj + 4) % 8
            do_issue = (not last) or jj < 8 - RS
            if unpeel and jj == 8 - RS:
                e.raw(f"s_cmp_eq_u32 s{sIt}, {NIT-1}\ns_cselect_b32 s{sV+2}, 0, s{sV+2}")
            for h in range(2):
                x = kq(s, h); i_ = 2*jj + h
                wv = NR - 1 if do_issue else 15 - i_
                e.raw(f"s_waitcnt vmcnt({wv}) lgkmcnt({15-i_})")
                if boost and do_issue: issue_k(so_, h, sV)
                for i in range(4): e.valu(f"v_cvt_f32_i32 v{x+i}, v{x+i}", [x+i], [x+i])
                pr = PB + i_; pe = pr & ~1
                sel = "op_sel_hi:[1,0,1]" if pr == pe else "op_sel:[0,1,0] op_sel_hi:[1,1,1]"
                for p in (0, 2):
                    e.valu(f"v_pk_fma_f32 {R(acc(h)+p)}, {R(x+p)}, {R(pe)}, {R(acc(h)+p)} {sel}", [acc(h)+p, acc(h)+p+1], [])
                if do_issue and not boost: issue_k(s, h, sV)
            if do_issue:
                adv()
                if barq and (jj + 1) % barq == 0: e.raw("s_barrier")
        if not last:
            for i in range(3): e.valu(f"v_mov_b32 v{Q[i]}, v{Q[i+1]}", [Q[i]], [])
    e.raw(f"s_mov_b32 s{sIt}, 0")
    e.raw(".p2align 6\nL_v:")
    if not unpeel:
        vbody(False)
        e.raw(f"s_add_u32 s{sIt}, s{sIt}, 1\ns_cmp_lt_u32 s{sIt}, {NIT-1}\ns_cbranch_scc1 L_v")
        vbody(True)
    else:
        vbody(False)
        e.raw(f"s_add_u32 s{sIt}, s{sIt}, 1\ns_cmp_lt_u32 s{sIt}, {NIT}\ns_cbranch_scc1 L_v")
    st(3)
    if clk: e.raw("s_memtime s[92:93]\ns_waitcnt lgkmcnt(0)")
    ad = 24; cc = 25; la = 26; hb = 27
    e.valu(f"v_lshrrev_b32 v{ad}, 5, v0", [ad], [])
    e.valu(f"v_lshlrev_b32 v{ad}, 6, v{ad}", [ad], [])
    e.raw(f"ds_bpermute_b32 v{cc}, v{ad}, v{vcr}")
    for i in range(4):
        x = acc(0) + i; y = acc(1) + i
        e.valu(f"v_permlane32_swap_b32 v{x}, v{y}", [x, y], [x, y], "perm")
    for i in range(4):
        x = acc(0) + i; y = acc(1) + i
        e.valu(f"v_add_f32 v{x}, v{x}, v{y}", [x], [])
    e.raw(f"s_lshl_b32 s66, s{sW}, 10")
    e.valu(f"v_lshlrev_b32 v{la}, 4, v0", [la], [])
    e.valu(f"v_add_u32 v{la}, s66, v{la}", [la], [])
    e.valu(f"v_and_b32 v{hb}, 16, v0", [hb], [])
    e.raw(f"s_lshl_b32 s66, s{sHp}, 5\ns_lshl_b32 s70, s{sRw}, 3\ns_add_u32 s66, s66, s70")
    e.valu(f"v_add_u32 v{hb}, s66, v{hb}", [hb], [])
    e.raw(f"ds_write_b64 v{hb}, v[{vm}:{vl}] offset:{MLB}")
    e.raw("s_waitcnt lgkmcnt(1)")
    for i in range(4):
        e.valu(f"v_sub_f32 v{acc(0)+i}, v{acc(0)+i}, v{cc}", [acc(0)+i], [])
    e.raw(f"ds_write_b128 v{la}, {R(acc(0),4)} offset:{SLB}")
    e.raw("s_waitcnt lgkmcnt(0)\ns_barrier")
    st(4)
    g = 24; dq = 25; aa = 26; ma = 27
    e.valu(f"v_lshrrev_b32 v{g}, 5, v0", [g], [])
    e.valu(f"v_and_b32 v{dq}, 31, v0", [dq], [])
    e.valu(f"v_lshlrev_b32 v{aa}, 4, v{dq}", [aa], [])
    e.raw(f"s_lshr_b32 s66, s{sW}, 1\ns_lshl_b32 s66, s66, 10\ns_and_b32 s70, s{sW}, 1\ns_lshl_b32 s70, s70, 9\ns_add_u32 s66, s66, s70")
    e.valu(f"v_lshl_add_u32 v{aa}, v{g}, 12, v{aa}", [aa], [])
    e.valu(f"v_add_u32 v{aa}, s66, v{aa}", [aa], [])
    e.raw(f"s_lshl_b32 s66, s{sW}, 4")
    e.valu(f"v_lshlrev_b32 v{ma}, 3, v{g}", [ma], [])
    e.valu(f"v_add_u32 v{ma}, s66, v{ma}", [ma], [])
    e.valu(f"v_mov_b32 v28, {NON}", [28], [])
    e.raw("ds_read_b32 v28, v28")
    e.raw(f"ds_read_b64 v[32:33], v{ma} offset:{MLB}")
    e.raw(f"ds_read_b128 v[8:11], v{aa} offset:{SLB}")
    e.raw("s_waitcnt lgkmcnt(1)")
    e.valu("v_not_b32 v29, v28", [29], [])
    e.valu("v_mov_b32 v14, v32", [14], [])
    e.valu("v_mov_b32 v12, v32", [12], [])
    e.valu("v_permlane32_swap_b32 v14, v12", [14, 12], [14, 12], "perm")
    e.valu("v_max_f32 v12, v12, v14", [12], [])
    e.valu("v_sub_f32 v32, v32, v12", [32], [])
    e.valu("v_exp_f32 v32, v32", [32], [32], "trans")
    e.valu("v_mul_f32 v13, v32, v33", [13], [32])
    e.raw("s_waitcnt lgkmcnt(0)")
    for c in range(4): e.valu(f"v_mul_f32 v{8+c}, v32, v{8+c}", [8+c], [32])
    for k, r in enumerate((8, 9, 10, 11, 13)): e.valu(f"v_mov_b32 v{16+k}, v{r}", [16+k], [])
    for k, r in enumerate((8, 9, 10, 11, 13)): e.valu(f"v_permlane32_swap_b32 v{16+k}, v{r}", [16+k, r], [16+k, r], "perm")
    for k, r in enumerate((8, 9, 10, 11, 13)): e.valu(f"v_add_f32 v{r}, v{r}, v{16+k}", [r], [])
    e.raw(f"s_lshl_b32 s66, s{sHg}, 3\ns_add_u32 s66, s66, s{sW}")
    e.raw(f"s_lshl_b32 s67, s{sXcd}, 2\ns_add_u32 s67, s67, s{sRg}")
    e.raw(f"s_lshl_b32 s72, s66, 5\ns_add_u32 s72, s72, s67")
    e.raw("s_mov_b32 s76, s62\ns_mov_b32 s77, s63\ns_mov_b32 s78, 0x300000\ns_mov_b32 s79, 0x20000")
    e.raw("s_lshl_b32 s73, s72, 10\ns_lshl_b32 s74, s72, 4\ns_add_u32 s74, s74, 0x200000")
    e.raw("s_mov_b32 s70, 0\ns_mov_b32 s71, -1")
    e.valu("v_cndmask_b32 v16, v8, v10, s[70:71]", [16], [])
    e.valu("v_mov_b32 v17, v28", [17], [])
    e.valu("v_cndmask_b32 v18, v9, v11, s[70:71]", [18], [])
    e.valu("v_mov_b32 v19, v29", [19], [])
    e.valu("v_mov_b32 v20, v12", [20], [])
    e.valu("v_mov_b32 v21, v28", [21], [])
    e.valu("v_mov_b32 v22, v13", [22], [])
    e.valu("v_mov_b32 v23, v29", [23], [])
    e.valu(f"v_lshlrev_b32 v{aa}, 5, v{dq}", [aa], [])
    e.valu(f"v_lshl_add_u32 v{aa}, v{g}, 4, v{aa}", [aa], [])
    e.valu(f"v_mov_b32 v{ma}, 0", [ma], [])
    e.raw(f"buffer_store_dwordx4 v[16:19], v{aa}, s[76:79], s73 offen sc1")
    e.raw("s_mov_b64 exec, 1")
    e.raw(f"buffer_store_dwordx4 v[20:23], v{ma}, s[76:79], s74 offen sc1")
    e.raw("s_mov_b64 exec, -1")
    st(5)
    e.raw(f"s_and_b32 s67, s{sHg}, 3\ns_cmp_eq_u32 s67, s{sRg}\ns_cbranch_scc0 L_dump")
    e.raw(f"s_lshl_b32 s66, s{sHg}, 3\ns_add_u32 s66, s66, s{sXcd}")
    e.raw(f"s_lshl_b32 s72, s66, 5\ns_lshl_b32 s67, s{sW}, 2\ns_add_u32 s72, s72, s67")
    e.raw("s_lshl_b32 s73, s72, 10\ns_lshl_b32 s74, s72, 4\ns_add_u32 s74, s74, 0x200000")
    e.valu(f"v_and_b32 v{ma}, 3, v0", [ma], [])
    e.valu(f"v_lshlrev_b32 v{ma}, 4, v{ma}", [ma], [])
    D0 = 32
    e.raw("s_mov_b32 s75, 0")
    if mlfirst:
        e.raw("L_poll0:")
        e.raw(f"buffer_load_dwordx4 v[48:51], v{ma}, s[76:79], s74 offen sc1")
        e.raw("s_waitcnt vmcnt(0)")
        e.valu(f"v_cmp_ne_u32 vcc, v49, v28", [], [])
        e.valu(f"v_cmp_ne_u32 s[70:71], v51, v29", [], [])
        e.raw("s_or_b64 vcc, vcc, s[70:71]")
        e.raw("s_cmp_eq_u64 vcc, 0\ns_cbranch_scc1 L_poll")
        if sleep: e.raw(f"s_sleep {sleep}")
        e.raw("s_branch L_poll0")
    e.raw("L_poll:")
    for i in range(4):
        e.raw(f"s_bitcmp1_b32 s75, {i}\ns_cbranch_scc1 L_sk{i}")
        e.raw(f"buffer_load_dwordx4 {R(D0+4*i,4)}, v{aa}, s[76:79], s73 offen offset:{1024*i} sc1")
        e.raw(f"L_sk{i}:")
    e.raw(f"buffer_load_dwordx4 v[48:51], v{ma}, s[76:79], s74 offen sc1")
    e.raw("s_waitcnt vmcnt(0)")
    for i in range(5):
        e.valu(f"v_cmp_ne_u32 vcc, v{D0+4*i+1}, v28", [], [])
        e.valu(f"v_cmp_ne_u32 s[70:71], v{D0+4*i+3}, v29", [], [])
        e.raw("s_or_b64 vcc, vcc, s[70:71]")
        e.raw(f"s_cmp_eq_u64 vcc, 0\ns_cselect_b32 s67, {1<<i}, 0\ns_or_b32 s75, s75, s67")
    e.raw("s_cmp_eq_u32 s75, 31\ns_cbranch_scc1 L_pdone")
    if sleep: e.raw(f"s_sleep {sleep}")
    e.raw("s_and_b32 s75, s75, 15\ns_branch L_poll")
    e.raw("L_pdone:")
    e.valu("v_max_f32_dpp v52, v48, v48 quad_perm:[1,0,3,2] row_mask:0xf bank_mask:0xf", [52], [48], "dpp")
    e.valu("v_max_f32_dpp v52, v52, v52 quad_perm:[2,3,0,1] row_mask:0xf bank_mask:0xf", [52], [52], "dpp")
    e.valu("v_sub_f32 v53, v48, v52", [53], [])
    e.valu("v_exp_f32 v53, v53", [53], [53], "trans")
    e.valu("v_mul_f32 v54, v53, v50", [54], [53])
    for i in range(4):
        e.valu(f"v_mov_b32_dpp v{56+i}, v53 quad_perm:[{i},{i},{i},{i}] row_mask:0xf bank_mask:0xf", [56+i], [53], "dpp")
    e.valu("v_add_f32_dpp v54, v54, v54 quad_perm:[1,0,3,2] row_mask:0xf bank_mask:0xf", [54], [54], "dpp")
    e.valu(f"v_mul_f32 v60, v56, v{D0}", [60], [])
    e.valu(f"v_mul_f32 v61, v56, v{D0+2}", [61], [])
    e.valu("v_add_f32_dpp v54, v54, v54 quad_perm:[2,3,0,1] row_mask:0xf bank_mask:0xf", [54], [54], "dpp")
    for i in range(1, 4):
        e.valu(f"v_fmac_f32 v60, v{56+i}, v{D0+4*i}", [60], [])
        e.valu(f"v_fmac_f32 v61, v{56+i}, v{D0+4*i+2}", [61], [])
    e.raw(f"s_lshl_b32 s67, s{sW}, 9")
    e.valu("v_lshlrev_b32 v62, 3, v0", [62], [])
    e.valu("v_add_u32 v63, s67, v62", [63], [])
    e.raw(f"s_lshl_b32 s67, s{sW}, 2")
    e.valu("v_mov_b32 v55, s67", [55], [])
    e.raw(f"ds_write_b64 v63, v[60:61] offset:{ABB}\nds_write_b32 v55, v52 offset:{ABB+4096}\nds_write_b32 v55, v54 offset:{ABB+4096+32}")
    e.raw("s_waitcnt lgkmcnt(0)\ns_barrier")
    e.raw(f"s_cmp_eq_u32 s{sW}, 0\ns_cbranch_scc0 L_dump")
    e.valu(f"v_mov_b32 v55, {ABB+4096}", [55], [])
    e.raw("ds_read_b128 v[32:35], v55\nds_read_b128 v[36:39], v55 offset:16\nds_read_b128 v[40:43], v55 offset:32\nds_read_b128 v[44:47], v55 offset:48")
    for i in range(8): e.raw(f"ds_read_b64 {R(64+2*i)}, v62 offset:{ABB+512*i}")
    e.raw("s_waitcnt lgkmcnt(8)")
    e.valu("v_max3_f32 v12, v32, v33, v34", [12], [])
    e.valu("v_max3_f32 v12, v12, v35, v36", [12], [])
    e.valu("v_max3_f32 v12, v12, v37, v38", [12], [])
    e.valu("v_max_f32 v12, v12, v39", [12], [])
    for i in range(8): e.valu(f"v_sub_f32 v{32+i}, v{32+i}, v12", [32+i], [])
    for i in range(8): e.valu(f"v_exp_f32 v{32+i}, v{32+i}", [32+i], [32+i], "trans")
    e.valu("v_mul_f32 v13, v32, v40", [13], [32])
    for i in range(1, 8): e.valu(f"v_fmac_f32 v13, v{32+i}, v{40+i}", [13], [32+i])
    e.valu("v_rcp_f32 v13, v13", [13], [13], "trans")
    e.raw("s_waitcnt lgkmcnt(0)")
    e.valu("v_mul_f32 v8, v32, v64", [8], [])
    e.valu("v_mul_f32 v9, v32, v65", [9], [])
    for i in range(1, 8):
        e.valu(f"v_fmac_f32 v8, v{32+i}, v{64+2*i}", [8], [])
        e.valu(f"v_fmac_f32 v9, v{32+i}, v{65+2*i}", [9], [])
    e.valu("v_mul_f32 v8, v8, v13", [8], [13])
    e.valu("v_mul_f32 v9, v9, v13", [9], [13])
    e.valu("v_cvt_pk_bf16_f32 v8, v8, v9", [8], [])
    e.raw("s_lshl_b32 s73, s66, 8")
    e.raw("s_mov_b32 s76, s58\ns_mov_b32 s77, s59\ns_mov_b32 s78, 0x4000\ns_mov_b32 s79, 0x20000")
    e.valu(f"v_lshrrev_b32 v{aa}, 2, v{aa}", [aa], [])
    e.raw(f"buffer_store_dword v8, v{aa}, s[76:79], s73 offen")
    if stamp: e.raw("s_waitcnt vmcnt(0)")
    st(6)
    e.raw("L_dump:")
    dump()
    e.raw("L_end:\ns_endpgm")
    e.raw(f""".section .rodata,"a"
.p2align 6
.amdhsa_kernel {KN}
.amdhsa_next_free_vgpr {NV}
.amdhsa_next_free_sgpr 102
.amdhsa_accum_offset {NV}
.amdhsa_group_segment_fixed_size 0
.amdhsa_kernarg_size 112
.amdhsa_user_sgpr_count 2
.amdhsa_user_sgpr_kernarg_segment_ptr 1
.amdhsa_system_sgpr_workgroup_id_x 1
.amdhsa_float_denorm_mode_32 3
.end_amdhsa_kernel""")
    return e.text()

if __name__ == "__main__":
    ap = argparse.ArgumentParser()
    ap.add_argument("--pol", default="nt"); ap.add_argument("-o"); ap.add_argument("--stamp", action="store_true")
    ap.add_argument("--rot", default="5,3,7"); ap.add_argument("--barq", type=int, default=4); ap.add_argument("--pre", type=int, default=8)
    ap.add_argument("--csnt", default="nt"); ap.add_argument("--sleep", type=int, default=0); ap.add_argument("--mlfirst", action="store_true"); ap.add_argument("--RS", type=int, default=4); ap.add_argument("--unpeel", action="store_true"); ap.add_argument("--diag", action="store_true"); ap.add_argument("--earlysc", action="store_true"); ap.add_argument("--boost", action="store_true"); ap.add_argument("--novalu", action="store_true"); ap.add_argument("--nolds", action="store_true"); ap.add_argument("--clk", action="store_true"); ap.add_argument("--earlycas", action="store_true"); ap.add_argument("--xil", type=int, default=0); ap.add_argument("--warm", action="store_true"); ap.add_argument("--hashm", type=lambda x: int(x, 0), default=0)
    a = ap.parse_args()
    open(a.o, "w").write(gen(pol=a.pol, stamp=a.stamp, rot=tuple(int(x) for x in a.rot.split(",")), barq=a.barq, pre=a.pre, csnt=a.csnt, sleep=a.sleep, mlfirst=a.mlfirst, RS=a.RS, unpeel=a.unpeel, hashm=a.hashm, diag=a.diag, warm=a.warm, xil=a.xil, earlycas=a.earlycas, clk=a.clk, novalu=a.novalu, nolds=a.nolds, boost=a.boost, earlysc=a.earlysc))
```
